```python
import torch

def _softmax(x, axis=-1):
    return torch.softmax(x, dim=axis)

def _gelu(x):
    return torch.nn.functional.gelu(x, approximate='tanh')

def _silu(x):
    return torch.nn.functional.silu(x)

def _sigmoid(x):
    return torch.sigmoid(x)

def _layernorm(x, axis=-1, eps=1e-05):
    m = x.mean(dim=axis, keepdim=True)
    v = x.var(dim=axis, keepdim=True, unbiased=False)
    return (x - m) / torch.sqrt(v + eps)

def _scatter_add(tgt, idx, src, axis=0):
    return tgt.clone().index_add_(axis, idx, src)

def _segment_sum(src, seg, n):
    out = torch.zeros((n,) + src.shape[1:], dtype=src.dtype)
    return out.index_add_(0, seg, src)

def _pad(x, pw):
    flat = tuple((v for pair in reversed(pw) for v in pair))
    return torch.nn.functional.pad(x, flat)
kernel_name = 'sequential_preLN__memory_aug_recurrent_mem_tr__glu_gated_geglu__prompt'

def setup_inputs():

    _w = lambda a: (lambda t: t.to(torch.bfloat16) if t.is_floating_point() else t)(torch.as_tensor(a))

    def _A_setup():
        B, S, Dm = (1, 2048, 512)
        H, Dh = (32, 128)
        M, seg = (8, 32)
        seg = min(seg, S)
        S = S // seg * seg
        return {'x': _w((lambda *s: torch.randn(*s, dtype=torch.bfloat16) * 0.05)(B, S, Dm)), 'mem0': _w((lambda *s: torch.randn(*s, dtype=torch.bfloat16) * 0.2)(B, M, Dm)), 'Wq': _w((lambda *s: torch.randn(*s, dtype=torch.bfloat16) * 1.6)(Dm, H, Dh) * Dm ** (-0.5)), 'Wk': _w((lambda *s: torch.randn(*s, dtype=torch.bfloat16) * 1.6)(Dm, H, Dh) * Dm ** (-0.5)), 'Wv': _w((lambda *s: torch.randn(*s, dtype=torch.bfloat16) * 0.2)(Dm, H, Dh) * Dm ** (-0.5)), 'Wo': _w((lambda *s: torch.randn(*s, dtype=torch.bfloat16) * 0.2)(H, Dh, Dm) * (H * Dh) ** (-0.5)), 'seg_len': seg}
    _A_in = _A_setup()

    def _B_setup():
        B, S, Dm, Df = (1, 2048, 512, 1376)
        return {'x': _w((lambda *s: torch.randn(*s, dtype=torch.bfloat16) * 0.05)(B, S, Dm)), 'w_gate': _w((lambda *s: torch.randn(*s, dtype=torch.bfloat16) * 0.4)(Dm, Df) * Dm ** (-0.5)), 'w_up': _w((lambda *s: torch.randn(*s, dtype=torch.bfloat16) * 0.4)(Dm, Df) * Dm ** (-0.5)), 'w_down': _w((lambda *s: torch.randn(*s, dtype=torch.bfloat16) * 0.4)(Df, Dm) * Df ** (-0.5))}
    _B_in = _B_setup()
    return {'A_x': _A_in['x'], 'A_mem0': _A_in['mem0'], 'A_Wq': _A_in['Wq'], 'A_Wk': _A_in['Wk'], 'A_Wv': _A_in['Wv'], 'A_Wo': _A_in['Wo'], 'A_seg_len': _A_in['seg_len'], 'B_x': _B_in['x'], 'B_w_gate': _B_in['w_gate'], 'B_w_up': _B_in['w_up'], 'B_w_down': _B_in['w_down']}

def reference(A_x, A_mem0, A_Wq, A_Wk, A_Wv, A_Wo, A_seg_len, B_x, B_w_gate, B_w_up, B_w_down):

    def _A_ref(x, mem0, Wq, Wk, Wv, Wo, seg_len):
        B, S, Dm = x.shape
        H, Dh = (Wq.shape[1], Wq.shape[2])
        M = mem0.shape[1]
        scale = Dh ** (-0.5)
        n_seg = S // seg_len
        L = M + seg_len
        idx = torch.arange(L)
        mask = (idx[:, None] < M) | (idx[:, None] >= idx[None, :])
        mem = mem0
        outs = []
        for s in range(n_seg):
            xs = x[:, s * seg_len:(s + 1) * seg_len, :].clone()
            h = torch.concatenate([mem, xs], axis=1)
            q = torch.einsum('btd,dhe->bhte', h, Wq)
            k = torch.einsum('btd,dhe->bhte', h, Wk)
            v = torch.einsum('btd,dhe->bhte', h, Wv)
            scores = torch.einsum('bhqe,bhke->bhqk', q, k) * scale
            scores = torch.where(mask[None, None], scores, -1000000000.0)
            p = _softmax(scores, axis=-1)
            o = torch.einsum('bhqk,bhke->bhqe', p, v)
            o = torch.einsum('bhte,hed->btd', o, Wo)
            mem = o[:, :M, :].clone()
            outs.append(o[:, M:, :])
        return torch.concatenate(outs, axis=1)

    def _B_ref(x, w_gate, w_up, w_down):
        g = torch.einsum('bsd,df->bsf', x, w_gate)
        u = torch.einsum('bsd,df->bsf', x, w_up)
        h = _gelu(g) * u
        return torch.einsum('bsf,fd->bsd', h, w_down)
    x = A_x
    h = x + _A_ref(_layernorm(x, axis=-1), A_mem0, A_Wq, A_Wk, A_Wv, A_Wo, A_seg_len)
    h2 = h + _B_ref(_layernorm(h, axis=-1), B_w_gate, B_w_up, B_w_down)
    return h2
```

```python
class Asm:
    def __init__(self):
        self.lines = []
        self.uid = 0

    def __call__(self, s):
        for ln in s.split("\n"):
            ln = ln.strip()
            if ln:
                if ln.endswith(":") and " " not in ln:
                    self.lines.append(ln)
                else:
                    self.lines.append("    " + ln)

    def raw(self, s):
        self.lines.append(s)

    def label(self, base):
        self.uid += 1
        return f"L_{base}_{self.uid}"

    def text(self):
        return "\n".join(self.lines) + "\n"

    def nop(self, n):
        while n > 0:
            k = min(n, 16)
            self(f"s_nop {k-1}")
            n -= k


def vr(b, n=1):
    return f"v{b}" if n == 1 else f"v[{b}:{b+n-1}]"


def ar(b, n=1):
    return f"a{b}" if n == 1 else f"a[{b}:{b+n-1}]"


def sr(b, n=1):
    return f"s{b}" if n == 1 else f"s[{b}:{b+n-1}]"


def reg(idx, n=1):
    if idx < 256:
        assert idx + n <= 256
        return vr(idx, n)
    return ar(idx - 256, n)


def kernel_header(a, name):
    a.raw(f".globl {name}")
    a.raw(".p2align 8")
    a.raw(f".type {name},@function")
    a.raw(f"{name}:")


def kernel_desc(name, vgpr, sgpr=102, accum=None):
    if accum is None:
        accum = (min(vgpr, 256) + 3) // 4 * 4
    return f""".amdhsa_kernel {name}
  .amdhsa_next_free_vgpr {vgpr}
  .amdhsa_next_free_sgpr {sgpr}
  .amdhsa_accum_offset {accum}
  .amdhsa_group_segment_fixed_size 0
  .amdhsa_kernarg_size 112
  .amdhsa_user_sgpr_count 2
  .amdhsa_user_sgpr_kernarg_segment_ptr 1
  .amdhsa_system_sgpr_workgroup_id_x 1
.end_amdhsa_kernel
"""


ARG = dict(x=0, mem0=1, wq=2, wk=3, wv=4, wo=5, seglen=6, bx=7, wg=8, wu=9, wd=10, out=11, dbg=12, ws=13)
SIZE = dict(x=2048 * 512 * 2, mem0=8 * 512 * 2, wq=512 * 4096 * 2, wk=512 * 4096 * 2, wv=512 * 4096 * 2,
            wo=4096 * 512 * 2, wg=512 * 1376 * 2, wu=512 * 1376 * 2, wd=1376 * 512 * 2, out=2048 * 512 * 2,
            dbg=256, ws=268435456)


def load_srd(a, sdst, name, stmp):
    a(f"s_load_dwordx2 s[{sdst}:{sdst+1}], s[0:1], {ARG[name]*8}")
    a("s_waitcnt lgkmcnt(0)")
    a(f"s_and_b32 s{sdst+1}, s{sdst+1}, 0xffff")
    a(f"s_mov_b32 s{sdst+2}, {SIZE[name]}")
    a(f"s_mov_b32 s{sdst+3}, 0x00020000")


MB = 1 << 20
WS = dict(
    XN=0 * MB,
    WQKV=2 * MB,
    WO=14 * MB,
    WG=18 * MB,
    WU=20 * MB,
    WD=22 * MB,
    QF=24 * MB,
    KF=40 * MB,
    VF=56 * MB,
    KMF=72 * MB,
    VMF=80 * MB,
    OF=88 * MB,
    H=104 * MB,
    HN=106 * MB,
    ACT=108 * MB,
    PART=116 * MB,
    MEMX=116 * MB + 512 * 1024,
    CNT=117 * MB,
    FLG=117 * MB + 65536,
    PB=128 * MB,
)
EXCH_BYTES = 512 * 1024 + 3 * 8192
```

```python
import sys, os
sys.path.insert(0, os.path.dirname(os.path.abspath(__file__)))
from asmlib import *

NAME = "sequential_preLN__memory_aug_recurrent_mem_tr__glu_gated_geglu__prompt"
SCALE_LOG2E = (128 ** -0.5) * 1.4426950408889634
import struct


def f32(x):
    return "0x%08x" % struct.unpack("<I", struct.pack("<f", x))[0]


def lane_setup(a, vl=1, vr_=2, vg=3, vl16=4):
    a(f"v_and_b32 v{vl}, 63, v0")
    a(f"v_and_b32 v{vr_}, 15, v{vl}")
    a(f"v_lshrrev_b32 v{vg}, 4, v{vl}")
    a(f"v_lshlrev_b32 v{vl16}, 4, v{vl}")


def wave_id(a, sdst, vtmp):
    a(f"v_lshrrev_b32 v{vtmp}, 6, v0")
    a("s_nop 0")
    a(f"v_readfirstlane_b32 s{sdst}, v{vtmp}")


def xred_g(a, x, t, op="v_add_f32"):
    a(f"v_mov_b32 v{t}, v{x}")
    a("s_nop 1")
    a(f"v_permlane16_swap_b32 v{x}, v{t}")
    a(f"{op} v{x}, v{x}, v{t}")
    a(f"v_mov_b32 v{t}, v{x}")
    a("s_nop 1")
    a(f"v_permlane32_swap_b32 v{x}, v{t}")
    a(f"{op} v{x}, v{x}, v{t}")


def ln_tile(a, srd_src, s_src, srd_ws, s_dst):
    a("v_lshlrev_b32 v5, 10, v2")
    a("v_lshl_add_u32 v5, v3, 4, v5")
    for kb in range(16):
        a(f"buffer_load_dwordx4 v[{16+4*kb}:{19+4*kb}], v5, s[{srd_src}:{srd_src+3}], s{s_src} offen offset:{kb*64}")
    a("s_waitcnt vmcnt(0)")
    a("v_mov_b32 v6, 0")
    a("v_mov_b32 v9, 0")
    for d in range(16, 80):
        a(f"v_lshlrev_b32 v7, 16, v{d}")
        a(f"v_and_b32 v8, 0xffff0000, v{d}")
        a("v_add_f32 v6, v6, v7")
        a("v_add_f32 v9, v9, v8")
    a("v_add_f32 v6, v6, v9")
    xred_g(a, 6, 7)
    a(f"v_mul_f32 v6, {f32(1.0/512)}, v6")
    a("v_mov_b32 v10, 0")
    a("v_mov_b32 v9, 0")
    for d in range(16, 80):
        a(f"v_lshlrev_b32 v7, 16, v{d}")
        a(f"v_and_b32 v8, 0xffff0000, v{d}")
        a("v_sub_f32 v7, v7, v6")
        a("v_sub_f32 v8, v8, v6")
        a("v_fmac_f32 v10, v7, v7")
        a("v_fmac_f32 v9, v8, v8")
    a("v_add_f32 v10, v10, v9")
    xred_g(a, 10, 7)
    a(f"v_mov_b32 v11, {f32(1e-5)}")
    a(f"v_fmac_f32 v11, {f32(1.0/512)}, v10")
    a("v_rsq_f32 v11, v11")
    a("s_nop 0")
    for d in range(16, 80):
        a(f"v_lshlrev_b32 v7, 16, v{d}")
        a(f"v_and_b32 v8, 0xffff0000, v{d}")
        a("v_sub_f32 v7, v7, v6")
        a("v_sub_f32 v8, v8, v6")
        a("v_mul_f32 v7, v7, v11")
        a("v_mul_f32 v8, v8, v11")
        a(f"v_cvt_pk_bf16_f32 v{d}, v7, v8")
    for kb in range(16):
        a(f"buffer_store_dwordx4 v[{16+4*kb}:{19+4*kb}], v4, s[{srd_ws}:{srd_ws+3}], s{s_dst} offen")
        if kb < 15:
            a(f"s_add_u32 s{s_dst}, s{s_dst}, 1024")


def k_prep(a):
    name = "prep_kernel"
    kernel_header(a, name)
    done = a.label("prep_done")
    a("s_cmp_ge_u32 s2, 1024")
    a(f"s_cbranch_scc1 {done}")
    a("s_load_dwordx16 s[36:51], s[0:1], 0")
    a("s_load_dwordx8 s[52:59], s[0:1], 64")
    wave_id(a, 3, 1)
    a("s_lshl_b32 s4, s2, 2")
    a("s_add_u32 s3, s3, s4")
    lane_setup(a)
    load_srd(a, 8, "ws", None)
    load_srd(a, 12, "x", None)
    skip = a.label("noinit")
    a(f"s_cmp_ge_u32 s3, {EXCH_BYTES//1024}")
    a(f"s_cbranch_scc1 {skip}")
    a("v_mov_b32 v16, -1\nv_mov_b32 v17, -1\nv_mov_b32 v18, -1\nv_mov_b32 v19, -1")
    a("s_lshl_b32 s4, s3, 10")
    a(f"s_add_u32 s4, s4, {WS['PART']}")
    a("buffer_store_dwordx4 v[16:19], v4, s[8:11], s4 offen")
    a(f"{skip}:")
    skip = a.label("noln")
    a("s_cmp_ge_u32 s3, 128")
    a(f"s_cbranch_scc1 {skip}")
    a("s_lshl_b32 s4, s3, 14")
    a(f"s_add_u32 s5, s4, {WS['XN']}")
    ln_tile(a, 12, 4, 8, 5)
    a(f"{skip}:")
    a("s_mov_b32 s20, s3")
    loop = a.label("rl_loop")
    common = a.label("rl_common")
    cB, cC, cD = a.label("cB"), a.label("cC"), a.label("cD")
    a(f"{loop}:")
    a("s_cmp_ge_u32 s20, 20608")
    a(f"s_cbranch_scc1 {done}")
    a("s_mov_b32 s27, 0x00020000")
    a("s_cmp_ge_u32 s20, 12288")
    a(f"s_cbranch_scc1 {cB}")
    a("s_lshr_b32 s33, s20, 12")
    a("s_cmp_eq_u32 s33, 1")
    a("s_cselect_b32 s24, s42, s40")
    a("s_cselect_b32 s25, s43, s41")
    a("s_cmp_eq_u32 s33, 2")
    a("s_cselect_b32 s24, s44, s24")
    a("s_cselect_b32 s25, s45, s25")
    a(f"s_mov_b32 s26, {SIZE['wq']}")
    a("s_mov_b32 s28, 8192")
    a("s_and_b32 s29, s20, 15")
    a("s_lshl_b32 s29, s29, 5")
    a("s_lshr_b32 s30, s20, 4")
    a("s_and_b32 s30, s30, 255")
    a("s_lshl_b32 s30, s30, 4")
    a("s_mov_b32 s31, 0")
    a("s_lshl_b32 s32, s20, 10")
    a(f"s_add_u32 s32, s32, {WS['WQKV']}")
    a(f"s_branch {common}")
    a(f"{cB}:")
    a("s_cmp_ge_u32 s20, 16384")
    a(f"s_cbranch_scc1 {cC}")
    a("s_sub_u32 s33, s20, 12288")
    a("s_mov_b32 s24, s46\ns_mov_b32 s25, s47")
    a(f"s_mov_b32 s26, {SIZE['wo']}")
    a("s_mov_b32 s28, 1024")
    a("s_and_b32 s29, s33, 127")
    a("s_lshl_b32 s29, s29, 5")
    a("s_lshr_b32 s30, s33, 7")
    a("s_lshl_b32 s30, s30, 4")
    a("s_mov_b32 s31, 1")
    a("s_lshl_b32 s32, s33, 10")
    a(f"s_add_u32 s32, s32, {WS['WO']}")
    a(f"s_branch {common}")
    a(f"{cC}:")
    a("s_cmp_ge_u32 s20, 19200")
    a(f"s_cbranch_scc1 {cD}")
    a("s_sub_u32 s33, s20, 16384")
    a("s_cmp_ge_u32 s33, 1408")
    a("s_cselect_b32 s24, s54, s52")
    a("s_cselect_b32 s25, s55, s53")
    a(f"s_mov_b32 s32, {WS['WG']}")
    a(f"s_cselect_b32 s32, {WS['WU']}, s32")
    a("s_cselect_b32 s34, 1408, 0")
    a("s_sub_u32 s33, s33, s34")
    a("s_mov_b32 s28, 2752")
    a("s_and_b32 s29, s33, 15")
    a("s_lshl_b32 s29, s29, 5")
    a("s_lshr_b32 s30, s33, 4")
    a("s_cmp_lt_u32 s30, 86")
    a(f"s_cselect_b32 s26, {SIZE['wg']}, 0")
    a("s_lshl_b32 s30, s30, 4")
    a("s_mov_b32 s31, 0")
    a("s_lshl_b32 s33, s33, 10")
    a("s_add_u32 s32, s32, s33")
    a(f"s_branch {common}")
    a(f"{cD}:")
    a("s_sub_u32 s33, s20, 19200")
    a("s_mov_b32 s24, s56\ns_mov_b32 s25, s57")
    a("s_mul_i32 s30, s33, 1490")
    a("s_lshr_b32 s30, s30, 16")
    a("s_mul_i32 s34, s30, 44")
    a("s_sub_u32 s29, s33, s34")
    a("s_cmp_lt_u32 s29, 43")
    a(f"s_cselect_b32 s26, {SIZE['wd']}, 0")
    a("s_lshl_b32 s29, s29, 5")
    a("s_lshl_b32 s30, s30, 4")
    a("s_mov_b32 s28, 1024")
    a("s_mov_b32 s31, 1")
    a("s_lshl_b32 s32, s33, 10")
    a(f"s_add_u32 s32, s32, {WS['WD']}")
    a(f"{common}:")
    a("s_and_b32 s25, s25, 0xffff")
    a("s_sub_u32 s33, 3, s31")
    a("v_lshlrev_b32 v6, s33, v3")
    a("v_add_u32 v6, s29, v6")
    a("v_mul_lo_u32 v6, v6, s28")
    a("v_add_u32 v7, s30, v2")
    a("v_lshl_add_u32 v6, v7, 1, v6")
    a("s_mul_i32 s33, s31, 12")
    for j in range(8):
        if j < 4:
            a(f"s_mul_i32 s{60+j}, s28, {j}")
        else:
            a(f"s_add_u32 s34, s33, {j}")
            a(f"s_mul_i32 s{60+j}, s28, s34")
    for j in range(8):
        a(f"buffer_load_ushort v{8+j}, v6, s[24:27], s{60+j} offen")
    a("s_waitcnt vmcnt(0)")
    for j in range(4):
        a(f"v_lshl_or_b32 v{16+j}, v{9+2*j}, 16, v{8+2*j}")
    a("buffer_store_dwordx4 v[16:19], v4, s[8:11], s32 offen")
    a("s_add_u32 s20, s20, 4096")
    a(f"s_branch {loop}")
    a(f"{done}:")
    a("s_endpgm")
    return name, 80, 1024, 0


def k_ln2(a):
    name = "ln2_kernel"
    kernel_header(a, name)
    done = a.label("ln2_done")
    a("s_cmp_ge_u32 s2, 32")
    a(f"s_cbranch_scc1 {done}")
    wave_id(a, 3, 1)
    a("s_lshl_b32 s4, s2, 2")
    a("s_add_u32 s3, s3, s4")
    lane_setup(a)
    load_srd(a, 8, "ws", None)
    a("s_lshl_b32 s4, s3, 14")
    a(f"s_add_u32 s5, s4, {WS['HN']}")
    a(f"s_add_u32 s4, s4, {WS['H']}")
    ln_tile(a, 8, 4, 8, 5)
    a(f"{done}:")
    a("s_endpgm")
    return name, 80, 32, 0


class G:
    pass


def gemm(a, name, nwg, MT, NT, KG, NST, a_base, a_stride, bmap, b_stride, tile_of_wg, orient, epilogue,
         pre=None):
    kernel_header(a, name)
    done = a.label(name + "_done")
    a(f"s_cmp_ge_u32 s2, {nwg}")
    a(f"s_cbranch_scc1 {done}")
    wave_id(a, 20, 1)
    lane_setup(a)
    load_srd(a, 8, "ws", None)
    tile_of_wg(a)
    if pre:
        pre(a)
    MTw, NTw = MT // 2, NT // 2
    g = G()
    g.MTw, g.NTw = MTw, NTw
    ACC = 16
    FA = ACC + MTw * NTw * 4
    FB = FA + MTw * 4
    g.vtop = FB + NTw * 4
    g.acc = lambda mi, ni: ACC + (mi * NTw + ni) * 4
    a("s_lshr_b32 s23, s20, 1")
    a("s_and_b32 s24, s20, 1")
    nqa, nqb = MT // 4, NT // 4
    nq = nqa + nqb
    SG = 28
    SL = SG + nq
    for q in range(nqa):
        a(f"s_add_u32 s60, s21, s20")
        a(f"s_add_u32 s60, s60, {4*q}")
        a(f"s_mul_i32 s60, s60, {a_stride}")
        a(f"s_add_u32 s{SG+q}, s60, {a_base}")
    for q in range(nqb):
        bc, tc = bmap(q)
        a(f"s_add_u32 s60, s22, s20")
        a(f"s_add_u32 s60, s60, {tc}")
        a(f"s_mul_i32 s60, s60, {b_stride}")
        a(f"s_add_u32 s{SG+nqa+q}, s60, {bc}")
    for q in range(nq):
        a(f"s_add_u32 s60, s20, {4*q}")
        a(f"s_mul_i32 s{SL+q}, s60, {KG*1024}")
    STG = (MT + NT) * KG * 1024
    lds = 3 * STG
    a(f"s_mul_i32 s60, s23, {MTw*KG*1024}")
    a("v_add_u32 v5, s60, v4")
    a(f"s_mul_i32 s60, s24, {NTw*KG*1024}")
    a(f"s_add_u32 s60, s60, {MT*KG*1024}")
    a("v_add_u32 v6, s60, v4")
    for i in range(MTw * NTw * 4):
        a(f"v_mov_b32 v{ACC+i}, 0")

    def issue(s_stage):
        for q in range(nq):
            a(f"s_add_u32 m0, {s_stage}, s{SL+q}")
            a("s_nop 0")
            for kg in range(KG):
                a(f"buffer_load_dwordx4 v4, s[8:11], s{SG+q} offen offset:{kg*1024} lds")
            a(f"s_add_u32 s{SG+q}, s{SG+q}, {KG*1024}")

    a("s_mov_b32 s26, 0")
    issue("s26")
    a(f"s_mov_b32 s26, {STG}")
    issue("s26")
    a("s_mov_b32 s26, 0")
    a(f"s_mov_b32 s27, {2*STG}")
    a("s_mov_b32 s25, 0")

    def body(o):
        loop = a.label(name + "_loop")
        a(f"{loop}:")
        a(f"s_waitcnt vmcnt({nq*KG})")
        a("s_barrier")
        issue("s27")
        a("v_add_u32 v7, s26, v5")
        a("v_add_u32 v8, s26, v6")
        for kg in range(KG):
            for mi in range(MTw):
                a(f"ds_read_b128 v[{FA+4*mi}:{FA+4*mi+3}], v7 offset:{(mi*KG+kg)*1024}")
            for ni in range(NTw):
                a(f"ds_read_b128 v[{FB+4*ni}:{FB+4*ni+3}], v8 offset:{(ni*KG+kg)*1024}")
            a("s_waitcnt lgkmcnt(0)")
            for mi in range(MTw):
                for ni in range(NTw):
                    c = g.acc(mi, ni)
                    fa, fb = vr(FA + 4 * mi, 4), vr(FB + 4 * ni, 4)
                    if o == 'nm':
                        a(f"v_mfma_f32_16x16x32_bf16 {vr(c,4)}, {fb}, {fa}, {vr(c,4)}")
                    else:
                        a(f"v_mfma_f32_16x16x32_bf16 {vr(c,4)}, {fa}, {fb}, {vr(c,4)}")
        a("s_mov_b32 s27, s26")
        a(f"s_add_u32 s26, s26, {STG}")
        a(f"s_cmp_ge_u32 s26, {3*STG}")
        a("s_cselect_b32 s26, 0, s26")
        a("s_add_u32 s25, s25, 1")
        a(f"s_cmp_lt_u32 s25, {NST}")
        a(f"s_cbranch_scc1 {loop}")
        a("s_waitcnt vmcnt(0)")
        a.nop(10)
        epilogue(a, g, o)

    if callable(orient):
        orient(a, body, done)
    else:
        body(orient)
    a(f"{done}:")
    a("s_endpgm")
    return name, g.vtop + 8, nwg, lds


def k_qkv(a):
    def tile_of_wg(a):
        a("s_and_b32 s21, s2, 7")
        a("s_lshl_b32 s21, s21, 4")
        a("s_lshr_b32 s70, s2, 3")
        a("s_lshl_b32 s22, s70, 3")

    def orient(a, body, done):
        lv = a.label("qkv_v")
        a("s_cmp_ge_u32 s70, 64")
        a(f"s_cbranch_scc1 {lv}")
        body('nm')
        a(f"s_branch {done}")
        a(f"{lv}:")
        body('mn')

    def epi(a, g, o):
        T = g.vtop
        a("s_and_b32 s71, s70, 31")
        if o == 'nm':
            a("s_cmp_ge_u32 s70, 32")
            a(f"s_mov_b32 s72, {WS['QF']}")
            a(f"s_cselect_b32 s72, {WS['KF']}, s72")
        else:
            a(f"s_mov_b32 s72, {WS['VF']}")
        a("s_lshl_b32 s73, s23, 3")
        a("s_add_u32 s73, s73, s21")
        a("s_lshr_b32 s73, s73, 1")
        a("s_lshl_b32 s73, s73, 5")
        a("s_add_u32 s73, s73, s71")
        a("s_lshl_b32 s73, s73, 2")
        a("s_lshl_b32 s74, s24, 1")
        a("s_add_u32 s73, s73, s74")
        a("s_lshl_b32 s73, s73, 11")
        a("s_add_u32 s73, s73, s72")
        k = 0
        if o == 'nm':
            for mi in range(8):
                for p in range(2):
                    c0, c1 = g.acc(mi, 2 * p), g.acc(mi, 2 * p + 1)
                    t = T + 4 * (k % 2)
                    k += 1
                    a(f"v_cvt_pk_bf16_f32 v{t}, v{c0}, v{c0+1}")
                    a(f"v_cvt_pk_bf16_f32 v{t+1}, v{c0+2}, v{c0+3}")
                    a(f"v_cvt_pk_bf16_f32 v{t+2}, v{c1}, v{c1+1}")
                    a(f"v_cvt_pk_bf16_f32 v{t+3}, v{c1+2}, v{c1+3}")
                    off = (mi >> 1) * 32 * 4 * 2048 + p * 2048 + (mi & 1) * 1024
                    a(f"s_add_u32 s74, s73, {off}")
                    a(f"buffer_store_dwordx4 v[{t}:{t+3}], v4, s[8:11], s74 offen")
        else:
            for q in range(4):
                for ni in range(4):
                    c0, c1 = g.acc(2 * q, ni), g.acc(2 * q + 1, ni)
                    t = T + 4 * (k % 2)
                    k += 1
                    a(f"v_cvt_pk_bf16_f32 v{t}, v{c0}, v{c0+1}")
                    a(f"v_cvt_pk_bf16_f32 v{t+1}, v{c0+2}, v{c0+3}")
                    a(f"v_cvt_pk_bf16_f32 v{t+2}, v{c1}, v{c1+1}")
                    a(f"v_cvt_pk_bf16_f32 v{t+3}, v{c1+2}, v{c1+3}")
                    off = q * 32 * 4 * 2048 + (ni >> 1) * 2048 + (ni & 1) * 1024
                    a(f"s_add_u32 s74, s73, {off}")
                    a(f"buffer_store_dwordx4 v[{t}:{t+3}], v4, s[8:11], s74 offen")

    return gemm(a, "qkv_kernel", 768, 16, 8, 1, 16, WS['XN'], 16384,
                lambda q: (WS['WQKV'], 4 * q), 16384, tile_of_wg, orient, epi)


def resid_epilogue(src_name, src_ws_off, dst_name, dst_ws_off):
    def epi(a, g, o):
        T = g.vtop
        if src_name == 'ws':
            ssrd = 8
        else:
            load_srd(a, 12, src_name, None)
            ssrd = 12
        if dst_name == 'ws':
            dsrd = 8
        else:
            load_srd(a, 16, dst_name, None)
            dsrd = 16
        a("v_lshlrev_b32 v5, 10, v2")
        a("v_lshl_add_u32 v5, v3, 3, v5")
        a(f"s_mul_i32 s60, s23, {g.MTw}")
        a("s_add_u32 s60, s60, s21")
        a("s_lshl_b32 s60, s60, 14")
        a(f"s_mul_i32 s61, s24, {g.NTw}")
        a("s_add_u32 s61, s61, s22")
        a("s_lshl_b32 s61, s61, 5")
        a("s_add_u32 s60, s60, s61")
        for mi in range(g.MTw):
            for ni in range(g.NTw):
                c = g.acc(mi, ni)
                a(f"s_add_u32 s61, s60, {mi*16384 + ni*32 + src_ws_off}")
                a(f"buffer_load_dwordx2 v[{T}:{T+1}], v5, s[{ssrd}:{ssrd+3}], s61 offen")
                a("s_waitcnt vmcnt(0)")
                a(f"v_lshlrev_b32 v{T+2}, 16, v{T}")
                a(f"v_and_b32 v{T+3}, 0xffff0000, v{T}")
                a(f"v_add_f32 v{c}, v{c}, v{T+2}")
                a(f"v_add_f32 v{c+1}, v{c+1}, v{T+3}")
                a(f"v_lshlrev_b32 v{T+2}, 16, v{T+1}")
                a(f"v_and_b32 v{T+3}, 0xffff0000, v{T+1}")
                a(f"v_add_f32 v{c+2}, v{c+2}, v{T+2}")
                a(f"v_add_f32 v{c+3}, v{c+3}, v{T+3}")
                a(f"v_cvt_pk_bf16_f32 v{c}, v{c}, v{c+1}")
                a(f"v_cvt_pk_bf16_f32 v{c+1}, v{c+2}, v{c+3}")
                a(f"s_add_u32 s61, s60, {mi*16384 + ni*32 + dst_ws_off}")
                a(f"buffer_store_dwordx2 v[{c}:{c+1}], v5, s[{dsrd}:{dsrd+3}], s61 offen")
    return epi


def k_wo(a):
    def tile_of_wg(a):
        a("s_and_b32 s22, s2, 7")
        a("s_lshl_b32 s22, s22, 2")
        a("s_lshr_b32 s21, s2, 3")
        a("s_lshl_b32 s21, s21, 2")
    return gemm(a, "wo_kernel", 256, 4, 4, 4, 32, WS['OF'], 128 * 1024,
                lambda q: (WS['WO'], 4 * q), 128 * 1024, tile_of_wg, 'nm',
                resid_epilogue('x', 0, 'ws', WS['H']))


def k_down(a):
    def tile_of_wg(a):
        a("s_and_b32 s22, s2, 7")
        a("s_lshl_b32 s22, s22, 2")
        a("s_lshr_b32 s21, s2, 3")
        a("s_lshl_b32 s21, s21, 2")
    return gemm(a, "down_kernel", 256, 4, 4, 4, 11, WS['ACT'], 44 * 1024,
                lambda q: (WS['WD'], 4 * q), 44 * 1024, tile_of_wg, 'nm',
                resid_epilogue('ws', WS['H'], 'out', 0))


def k_ffn1(a):
    def tile_of_wg(a):
        a("s_mul_i32 s21, s2, 5958")
        a("s_lshr_b32 s21, s21, 16")
        a("s_mul_i32 s60, s21, 11")
        a("s_sub_u32 s22, s2, s60")
        a("s_lshl_b32 s22, s22, 3")
        a("s_lshl_b32 s21, s21, 2")

    def bmap(q):
        return (WS['WU'] if (q & 1) else WS['WG'], (q >> 1) * 4)

    def epi(a, g, o):
        T = g.vtop
        C1 = 2.0 * (2.0 / 3.141592653589793) ** 0.5 * 1.4426950408889634
        a(f"s_mov_b32 s62, {f32(-C1)}")
        a(f"s_mov_b32 s63, {f32(-C1*0.044715)}")
        for mi in range(2):
            for ni in range(4):
                cg, cu = g.acc(mi, ni), g.acc(mi, ni + 4)
                for i in range(4):
                    x = cg + i
                    a(f"v_mul_f32 v{T}, v{x}, v{x}")
                    a(f"v_mov_b32 v{T+1}, s62")
                    a(f"v_fmac_f32 v{T+1}, s63, v{T}")
                    a(f"v_mul_f32 v{T+1}, v{T+1}, v{x}")
                    a(f"v_exp_f32 v{T+1}, v{T+1}")
                    a("s_nop 0")
                    a(f"v_add_f32 v{T+1}, 1.0, v{T+1}")
                    a(f"v_rcp_f32 v{T+1}, v{T+1}")
                    a("s_nop 0")
                    a(f"v_mul_f32 v{x}, v{x}, v{T+1}")
                    a(f"v_mul_f32 v{x}, v{x}, v{cu+i}")
        a("s_lshl_b32 s60, s23, 1")
        a("s_add_u32 s60, s60, s21")
        a(f"s_mul_i32 s60, s60, 44")
        a("s_lshl_b32 s61, s24, 2")
        a("s_add_u32 s61, s61, s22")
        a("s_lshr_b32 s61, s61, 1")
        a("s_add_u32 s60, s60, s61")
        a("s_lshl_b32 s60, s60, 10")
        a(f"s_add_u32 s60, s60, {WS['ACT']}")
        k = 0
        for mi in range(2):
            for p in range(2):
                c0, c1 = g.acc(mi, 2 * p), g.acc(mi, 2 * p + 1)
                t = T + 4 * (k % 2)
                k += 1
                a(f"v_cvt_pk_bf16_f32 v{t}, v{c0}, v{c0+1}")
                a(f"v_cvt_pk_bf16_f32 v{t+1}, v{c0+2}, v{c0+3}")
                a(f"v_cvt_pk_bf16_f32 v{t+2}, v{c1}, v{c1+1}")
                a(f"v_cvt_pk_bf16_f32 v{t+3}, v{c1+2}, v{c1+3}")
                a(f"s_add_u32 s61, s60, {mi*44*1024 + p*1024}")
                a(f"buffer_store_dwordx4 v[{t}:{t+3}], v4, s[8:11], s61 offen")

    return gemm(a, "ffn1_kernel", 352, 4, 16, 2, 8, WS['HN'], 16384, bmap, 16384, tile_of_wg, 'nm', epi)


def softmax_tiles(a, S, ntiles, tmp):
    m, t, c = tmp, tmp + 1, tmp + 2
    regs = [b + i for b in S for i in range(4)]
    a(f"v_max_f32 v{m}, v{regs[0]}, v{regs[1]}")
    i = 2
    while i < len(regs):
        a(f"v_max3_f32 v{m}, v{m}, v{regs[i]}, v{regs[i+1]}")
        i += 2
    xred_g(a, m, t, "v_max_f32")
    a(f"v_mul_f32 v{m}, {f32(-SCALE_LOG2E)}, v{m}")
    a(f"v_mov_b32 v{c}, {f32(SCALE_LOG2E)}")
    for r in regs:
        a(f"v_fma_f32 v{r}, v{r}, v{c}, v{m}")
    for r in regs:
        a(f"v_exp_f32 v{r}, v{r}")
    a("s_nop 0")
    a(f"v_add_f32 v{m}, v{regs[0]}, v{regs[1]}")
    for r in regs[2:]:
        a(f"v_add_f32 v{m}, v{m}, v{r}")
    xred_g(a, m, t, "v_add_f32")
    a(f"v_rcp_f32 v{m}, v{m}")
    a("s_nop 0")
    for r in regs:
        a(f"v_mul_f32 v{r}, v{r}, v{m}")


def k_attn(a):
    name = "attn_kernel"
    kernel_header(a, name)
    done = a.label("attn_done")
    a("s_cmp_ge_u32 s2, 512")
    a(f"s_cbranch_scc1 {done}")
    wave_id(a, 3, 1)
    a("s_lshl_b32 s4, s2, 2")
    a("s_add_u32 s3, s3, s4")
    lane_setup(a)
    load_srd(a, 8, "ws", None)
    Q, K, V, KM, VM = 16, 48, 80, 112, 128
    S = 144
    P = 168
    O = 180
    TMP = 244
    a("s_lshl_b32 s4, s3, 13")
    for nm, base in (("QF", Q), ("KF", K), ("VF", V)):
        a(f"s_add_u32 s5, s4, {WS[nm]}")
        for i in range(8):
            if i == 4:
                a("s_add_u32 s5, s5, 4096")
            a(f"buffer_load_dwordx4 v[{base+4*i}:{base+4*i+3}], v4, s[8:11], s5 offen offset:{(i%4)*1024}")
    a("s_lshl_b32 s4, s3, 12")
    a(f"s_add_u32 s5, s4, {WS['KMF']}")
    for i in range(4):
        a(f"buffer_load_dwordx4 v[{KM+4*i}:{KM+4*i+3}], v4, s[8:11], s5 offen offset:{i*1024}")
    a(f"s_add_u32 s5, s4, {WS['VMF']}")
    a("v_lshlrev_b32 v5, 3, v1")
    for i in range(8):
        a(f"buffer_load_dwordx2 v[{VM+2*i}:{VM+2*i+1}], v5, s[8:11], s5 offen offset:{i*512}")
    for i in range(24):
        a(f"v_mov_b32 v{S+i}, 0")
    a("s_waitcnt vmcnt(0)")
    for qt in range(2):
        for kt in range(3):
            if qt == 0 and kt == 2:
                continue
            s = S + (qt * 3 + kt) * 4
            for w in range(4):
                ka = KM + 4 * w if kt == 0 else K + (w * 2 + kt - 1) * 4
                qb = Q + (w * 2 + qt) * 4
                a(f"v_mfma_f32_16x16x32_bf16 {vr(s,4)}, {vr(ka,4)}, {vr(qb,4)}, {vr(s,4)}")
    a.nop(10)
    a("v_mov_b32 v6, 0xff800000")
    a("v_lshlrev_b32 v7, 2, v3")
    a("v_cmp_gt_u32 vcc, 2, v3")
    a("s_nop 1")
    for qt in range(2):
        for i in range(4):
            r = S + (qt * 3) * 4 + i
            a(f"v_cndmask_b32 v{r}, v6, v{r}, vcc")
    for i in range(4):
        a(f"v_add_u32 v8, {i}, v7")
        a("v_cmp_ge_u32 vcc, v2, v8")
        a("s_nop 1")
        r = S + (0 * 3 + 1) * 4 + i
        a(f"v_cndmask_b32 v{r}, v6, v{r}, vcc")
        r = S + (1 * 3 + 2) * 4 + i
        a(f"v_cndmask_b32 v{r}, v6, v{r}, vcc")
    softmax_tiles(a, [S, S + 4], 2, TMP)
    softmax_tiles(a, [S + 12, S + 16, S + 20], 3, TMP)
    for qt in range(2):
        s0, s1, s2 = S + qt * 12, S + qt * 12 + 4, S + qt * 12 + 8
        p = P + qt * 6
        a(f"v_cvt_pk_bf16_f32 v{p}, v{s1}, v{s1+1}")
        a(f"v_cvt_pk_bf16_f32 v{p+1}, v{s1+2}, v{s1+3}")
        if qt == 0:
            a(f"v_mov_b32 v{p+2}, 0")
            a(f"v_mov_b32 v{p+3}, 0")
        else:
            a(f"v_cvt_pk_bf16_f32 v{p+2}, v{s2}, v{s2+1}")
            a(f"v_cvt_pk_bf16_f32 v{p+3}, v{s2+2}, v{s2+3}")
        a(f"v_cvt_pk_bf16_f32 v{p+4}, v{s0}, v{s0+1}")
        a(f"v_cvt_pk_bf16_f32 v{p+5}, v{s0+2}, v{s0+3}")
    for i in range(64):
        a(f"v_mov_b32 v{O+i}, 0")
    a("s_nop 1")
    for qt in range(2):
        p = P + qt * 6
        for et in range(8):
            o = O + (qt * 8 + et) * 4
            a(f"v_mfma_f32_16x16x32_bf16 {vr(o,4)}, {vr(V+4*et,4)}, {vr(p,4)}, {vr(o,4)}")
    for qt in range(2):
        p = P + qt * 6
        for et in range(8):
            o = O + (qt * 8 + et) * 4
            a(f"v_mfma_f32_16x16x16_bf16 {vr(o,4)}, {vr(VM+2*et,2)}, {vr(p+4,2)}, {vr(o,4)}")
    a.nop(10)
    a("s_lshr_b32 s4, s3, 5")
    a("s_lshl_b32 s4, s4, 18")
    a("s_and_b32 s5, s3, 31")
    a("s_lshl_b32 s5, s5, 12")
    a("s_add_u32 s4, s4, s5")
    a(f"s_add_u32 s4, s4, {WS['OF']}")
    for qt in range(2):
        for w in range(4):
            o0, o1 = O + (qt * 8 + 2 * w) * 4, O + (qt * 8 + 2 * w + 1) * 4
            a(f"v_cvt_pk_bf16_f32 v{o0}, v{o0}, v{o0+1}")
            a(f"v_cvt_pk_bf16_f32 v{o0+1}, v{o0+2}, v{o0+3}")
            a(f"v_cvt_pk_bf16_f32 v{o0+2}, v{o1}, v{o1+1}")
            a(f"v_cvt_pk_bf16_f32 v{o0+3}, v{o1+2}, v{o1+3}")
            a(f"buffer_store_dwordx4 v[{o0}:{o0+3}], v4, s[8:11], s4 offen offset:{w*1024}")
        if qt == 0:
            a(f"s_add_u32 s4, s4, {128*1024}")
    a(f"{done}:")
    a("s_endpgm")
    return name, 248, 512, 0


L_WO, L_MEMS, L_SX, L_OX = 32768, 0, 16384, 28672
SPIN_MAX = 1 << 22


def k_chain(a):
    name = "chain_kernel"
    kernel_header(a, name)
    done = a.label("chain_done")
    a("s_cmp_ge_u32 s2, 256")
    a(f"s_cbranch_scc1 {done}")
    wave_id(a, 20, 1)
    lane_setup(a)
    load_srd(a, 8, "ws", None)
    load_srd(a, 12, "dbg", None)
    load_srd(a, 16, "mem0", None)
    a("s_getreg_b32 s21, hwreg(HW_REG_XCC_ID)")
    a("s_and_b32 s21, s21, 15")
    lbar = a.label("role_bar")
    a("s_cmp_lg_u32 s20, 0")
    a(f"s_cbranch_scc1 {lbar}")
    a("v_mov_b32 v6, 1")
    a("v_mov_b32 v7, 0")
    a("v_mov_b32 v8, 4")
    a("s_mov_b64 s[22:23], exec")
    a("s_mov_b64 exec, 1")
    lnx, lgot, lA2 = a.label("notx0"), a.label("gotrole"), a.label("takeA")
    a("s_cmp_lg_u32 s21, 0")
    a(f"s_cbranch_scc1 {lnx}")
    a("buffer_atomic_add v6, v7, s[12:15], 0 offen sc0")
    a("s_waitcnt vmcnt(0)")
    a("v_readfirstlane_b32 s24, v6")
    a("s_cmp_lt_u32 s24, 32")
    a(f"s_cbranch_scc1 {lgot}")
    a("v_mov_b32 v6, 1")
    a("buffer_atomic_add v6, v8, s[12:15], 0 offen sc0")
    a("s_waitcnt vmcnt(0)")
    a("s_mov_b32 s24, -1")
    a(f"s_branch {lgot}")
    a(f"{lnx}:")
    a("buffer_atomic_add v6, v8, s[12:15], 0 offen sc0")
    a("s_waitcnt vmcnt(0)")
    a("v_readfirstlane_b32 s24, v6")
    a("s_cmp_ge_u32 s24, 224")
    a(f"s_cbranch_scc1 {lA2}")
    a("s_mov_b32 s24, -1")
    a(f"s_branch {lgot}")
    a(f"{lA2}:")
    a("v_mov_b32 v6, 1")
    a("buffer_atomic_add v6, v7, s[12:15], 0 offen sc0")
    a("s_waitcnt vmcnt(0)")
    a("v_readfirstlane_b32 s24, v6")
    a(f"{lgot}:")
    a("v_mov_b32 v6, s24")
    a(f"v_mov_b32 v7, {L_OX}")
    a("ds_write_b32 v7, v6")
    a("s_waitcnt lgkmcnt(0)")
    a("s_mov_b64 exec, s[22:23]")
    a(f"{lbar}:")
    a("s_barrier")
    a(f"v_mov_b32 v7, {L_OX}")
    a("ds_read_b32 v6, v7")
    a("s_waitcnt lgkmcnt(0)")
    a("v_readfirstlane_b32 s24, v6")
    a("s_cmp_ge_u32 s24, 32")
    a(f"s_cbranch_scc1 {done}")
    a("s_barrier")
    lsk = a.label("nopub")
    a("s_cmp_lg_u32 s20, 0")
    a(f"s_cbranch_scc1 {lsk}")
    a("s_cmp_eq_u32 s21, 0")
    a("s_cselect_b32 s25, 1, 2")
    a("v_mov_b32 v6, s25")
    a("s_lshl_b32 s25, s24, 2")
    a("s_add_u32 s25, s25, 64")
    a("v_mov_b32 v7, s25")
    a("s_mov_b64 s[22:23], exec")
    a("s_mov_b64 exec, 1")
    a("buffer_store_dword v6, v7, s[12:15], 0 offen sc1")
    a("s_mov_b64 exec, s[22:23]")
    a(f"{lsk}:")
    for mat in range(3):
        for t in range(2):
            a("s_lshl_b32 s25, s24, 3")
            a("s_lshl_b32 s26, s20, 1")
            a("s_add_u32 s25, s25, s26")
            a(f"s_add_u32 s25, s25, {mat*256+t}")
            a("s_lshl_b32 s25, s25, 14")
            a(f"s_add_u32 s25, s25, {WS['WQKV']}")
            for kb in range(16):
                idx = [256, 384, 128][mat] + (t * 16 + kb) * 4
                if kb % 4 == 0 and kb:
                    a("s_add_u32 s25, s25, 4096")
                a(f"buffer_load_dwordx4 {reg(idx,4)}, v4, s[8:11], s25 offen offset:{(kb%4)*1024}")
    for i in range(8):
        a("s_lshl_b32 s25, s20, 3")
        a(f"s_add_u32 s25, s25, {i}")
        a("s_lshl_b32 s26, s25, 12")
        a(f"s_add_u32 m0, s26, {L_WO}")
        a("s_lshl_b32 s25, s25, 7")
        a("s_lshl_b32 s26, s24, 2")
        a("s_add_u32 s25, s25, s26")
        a("s_lshl_b32 s25, s25, 10")
        a(f"s_add_u32 s25, s25, {WS['WO']}")
        for kb in range(4):
            a(f"buffer_load_dwordx4 v4, s[8:11], s25 offen offset:{kb*1024} lds")
    a("v_mov_b32 v8, 0\nv_mov_b32 v9, 0\nv_mov_b32 v10, 0\nv_mov_b32 v11, 0")
    a("v_lshlrev_b32 v6, 4, v0")
    for i in range(4):
        a(f"ds_write_b128 v6, v[8:11] offset:{L_MEMS + i*4096}")
    a("s_mov_b32 s27, 0")
    lp = a.label("modepoll")
    a("v_lshlrev_b32 v6, 2, v1")
    a("v_and_b32 v6, 127, v6")
    a(f"{lp}:")
    a("buffer_load_dword v7, v6, s[12:15], 0 offen offset:64 sc1")
    a("s_waitcnt vmcnt(0)")
    a("s_add_u32 s27, s27, 1")
    a(f"s_cmp_gt_u32 s27, {SPIN_MAX}")
    a(f"s_cbranch_scc1 {done}")
    a("v_cmp_eq_u32 vcc, 0, v7")
    a(f"s_cbranch_vccnz {lp}")
    a("v_cmp_eq_u32 vcc, 2, v7")
    a("s_cmp_lg_u64 vcc, 0")
    a("s_cselect_b32 s28, 1, 0")
    a("v_and_b32 v6, 31, v1")
    a("v_lshrrev_b32 v7, 1, v6")
    a("v_lshlrev_b32 v5, 10, v7")
    a("v_and_b32 v7, 1, v6")
    a("v_lshl_add_u32 v5, v7, 9, v5")
    a("v_lshrrev_b32 v7, 5, v1")
    a("s_lshl_b32 s25, s20, 1")
    a("v_add_u32 v7, s25, v7")
    a("v_lshl_add_u32 v5, v7, 4, v5")
    a(f"v_add_u32 v5, {L_MEMS}, v5")
    a("v_lshlrev_b32 v6, 5, v1")
    a("s_lshl_b32 s25, s20, 11")
    a("v_add_u32 v6, s25, v6")
    a("v_lshlrev_b32 v7, 5, v2")
    a("v_lshl_add_u32 v7, v3, 3, v7")
    a("s_lshl_b32 s25, s24, 8")
    a("v_add_u32 v7, s25, v7")
    RD, MO = 120, 121
    a(f"v_lshrrev_b32 v{RD}, 3, v1")
    a(f"v_lshlrev_b32 v{RD}, 10, v{RD}")
    a(f"v_and_b32 v{MO}, 7, v1")
    a(f"v_lshl_add_u32 v{RD}, v{MO}, 3, v{RD}")
    a("s_lshl_b32 s25, s24, 13")
    a("s_lshl_b32 s26, s20, 6")
    a("s_add_u32 s25, s25, s26")
    a(f"v_add_u32 v{RD}, s25, v{RD}")
    a(f"v_lshrrev_b32 v8, 2, v{MO}")
    a("s_lshl_b32 s25, s20, 1")
    a("v_add_u32 v8, s25, v8")
    a("v_lshlrev_b32 v8, 10, v8")
    a(f"v_and_b32 v{MO}, 3, v{MO}")
    a(f"v_lshl_add_u32 v{MO}, v{MO}, 3, v8")
    a("s_lshl_b32 s25, s24, 5")
    a(f"v_add_u32 v{MO}, s25, v{MO}")
    a("s_lshl_b32 s30, s24, 2")
    a("s_add_u32 s30, s30, s20")
    a("s_lshl_b32 s31, s30, 10")
    a("s_lshl_b32 s30, s30, 11")
    MEMF, QA, KA, VA = 8, 72, 80, 88
    KX, VX, NX = 96, 104, 112
    a("s_mov_b32 s29, 0")
    def load_kv():
        a("s_lshl_b32 s25, s29, 18")
        a("s_add_u32 s25, s25, s30")
        a(f"s_add_u32 s26, s25, {WS['KF']}")
        a(f"buffer_load_dwordx4 v[{KX}:{KX+3}], v4, s[8:11], s26 offen")
        a(f"buffer_load_dwordx4 v[{KX+4}:{KX+7}], v4, s[8:11], s26 offen offset:1024")
        a(f"s_add_u32 s26, s25, {WS['VF']}")
        a(f"buffer_load_dwordx4 v[{VX}:{VX+3}], v4, s[8:11], s26 offen")
        a(f"buffer_load_dwordx4 v[{VX+4}:{VX+7}], v4, s[8:11], s26 offen offset:1024")
    load_kv()
    a("buffer_load_dwordx4 v[8:11], v6, s[16:19], 0 offen")
    a("buffer_load_dwordx4 v[12:15], v6, s[16:19], 0 offen offset:16")
    a("s_waitcnt vmcnt(0) lgkmcnt(0)")
    a("s_barrier")
    lstage = a.label("stage")
    a(f"s_branch {lstage}")

    loop = a.label("step")
    a(f"{loop}:")
    lp = a.label("mempoll")
    a(f"{lp}:")
    a("buffer_load_dwordx4 v[8:11], v6, s[8:11], s32 offen sc1")
    a("buffer_load_dwordx4 v[12:15], v6, s[8:11], s32 offen offset:16 sc1")
    a("s_waitcnt vmcnt(0)")
    a("v_max3_u32 v16, v8, v9, v10")
    a("v_max3_u32 v16, v16, v11, v12")
    a("v_max3_u32 v16, v16, v13, v14")
    a("v_max_u32 v16, v16, v15")
    a("s_add_u32 s27, s27, 1")
    a(f"s_cmp_gt_u32 s27, {SPIN_MAX}")
    a(f"s_cbranch_scc1 {done}")
    a("v_cmp_eq_u32 vcc, -1, v16")
    a(f"s_cbranch_vccnz {lp}")
    a(f"{lstage}:")
    a("ds_write_b128 v5, v[8:11]")
    a("ds_write_b128 v5, v[12:15] offset:256")
    a("s_waitcnt lgkmcnt(0)")
    a("s_barrier")
    for kb in range(16):
        a(f"ds_read_b128 v[{MEMF+4*kb}:{MEMF+4*kb+3}], v4 offset:{L_MEMS+kb*1024}")
    for i in range(24):
        a(f"v_mov_b32 v{QA+i}, 0")
    for kb in range(16):
        a(f"s_waitcnt lgkmcnt({15-kb})")
        m = vr(MEMF + 4 * kb, 4)
        for t in range(2):
            a(f"v_mfma_f32_16x16x32_bf16 {vr(QA+4*t,4)}, {reg(256+(t*16+kb)*4,4)}, {m}, {vr(QA+4*t,4)}")
            a(f"v_mfma_f32_16x16x32_bf16 {vr(KA+4*t,4)}, {reg(384+(t*16+kb)*4,4)}, {m}, {vr(KA+4*t,4)}")
            a(f"v_mfma_f32_16x16x32_bf16 {vr(VA+4*t,4)}, {m}, {reg(128+(t*16+kb)*4,4)}, {vr(VA+4*t,4)}")
    a.nop(10)
    QB, KB, VM, S = 8, 12, 16, 20
    a(f"v_cvt_pk_bf16_f32 v{QB}, v{QA}, v{QA+1}")
    a(f"v_cvt_pk_bf16_f32 v{QB+1}, v{QA+2}, v{QA+3}")
    a(f"v_cvt_pk_bf16_f32 v{QB+2}, v{QA+4}, v{QA+5}")
    a(f"v_cvt_pk_bf16_f32 v{QB+3}, v{QA+6}, v{QA+7}")
    a(f"v_cvt_pk_bf16_f32 v{KB}, v{KA}, v{KA+1}")
    a(f"v_cvt_pk_bf16_f32 v{KB+1}, v{KA+2}, v{KA+3}")
    a(f"v_cvt_pk_bf16_f32 v{KB+2}, v{KA+4}, v{KA+5}")
    a(f"v_cvt_pk_bf16_f32 v{KB+3}, v{KA+6}, v{KA+7}")
    for t in range(2):
        a(f"v_cvt_pk_bf16_f32 v{VM+2*t}, v{VA+4*t}, v{VA+4*t+1}")
        a(f"v_cvt_pk_bf16_f32 v{VM+2*t+1}, v{VA+4*t+2}, v{VA+4*t+3}")
    for i in range(12):
        a(f"v_mov_b32 v{S+i}, 0")
    a("s_lshl_b32 s25, s29, 17")
    a("s_add_u32 s25, s25, s31")
    a(f"s_add_u32 s26, s25, {WS['KMF']}")
    a(f"buffer_store_dwordx4 v[{KB}:{KB+3}], v4, s[8:11], s26 offen")
    a(f"s_add_u32 s26, s25, {WS['VMF']}")
    a("v_lshlrev_b32 v32, 3, v1")
    a(f"buffer_store_dwordx2 v[{VM}:{VM+1}], v32, s[8:11], s26 offen")
    a(f"buffer_store_dwordx2 v[{VM+2}:{VM+3}], v32, s[8:11], s26 offen offset:512")
    a("s_cmp_eq_u32 s29, 63")
    a(f"s_cbranch_scc1 {done}")
    a(f"v_mfma_f32_16x16x32_bf16 {vr(S,4)}, {vr(KB,4)}, {vr(QB,4)}, {vr(S,4)}")
    a(f"v_mfma_f32_16x16x32_bf16 {vr(S+4,4)}, {vr(KX,4)}, {vr(QB,4)}, {vr(S+4,4)}")
    a(f"v_mfma_f32_16x16x32_bf16 {vr(S+8,4)}, {vr(KX+4,4)}, {vr(QB,4)}, {vr(S+8,4)}")
    a(f"s_mul_i32 s25, s20, 3072")
    a("v_add_u32 v32, s25, v4")
    a.nop(8)
    for t in range(3):
        a(f"ds_write_b128 v32, v[{S+4*t}:{S+4*t+3}] offset:{L_SX+t*1024}")
    a("s_waitcnt lgkmcnt(0)")
    a("s_barrier")
    X = 36
    for w in range(4):
        for t in range(3):
            a(f"ds_read_b128 v[{X+(w*3+t)*4}:{X+(w*3+t)*4+3}], v4 offset:{L_SX+(w*3+t)*1024}")
    a("s_waitcnt lgkmcnt(0)")
    for i in range(12):
        a(f"v_add_f32 v{S+i}, v{X+i}, v{X+12+i}")
        a(f"v_add_f32 v{X+24+i}, v{X+24+i}, v{X+36+i}")
        a(f"v_add_f32 v{S+i}, v{S+i}, v{X+24+i}")
    a("v_mov_b32 v32, 0xff800000")
    a("v_cmp_gt_u32 vcc, 2, v3")
    a("s_nop 1")
    for i in range(4):
        a(f"v_cndmask_b32 v{S+i}, v32, v{S+i}, vcc")
    softmax_tiles(a, [S, S + 4, S + 8], 3, 33)
    PT, PM, O = 36, 40, 44
    a(f"v_cvt_pk_bf16_f32 v{PT}, v{S+4}, v{S+5}")
    a(f"v_cvt_pk_bf16_f32 v{PT+1}, v{S+6}, v{S+7}")
    a(f"v_cvt_pk_bf16_f32 v{PT+2}, v{S+8}, v{S+9}")
    a(f"v_cvt_pk_bf16_f32 v{PT+3}, v{S+10}, v{S+11}")
    a(f"v_cvt_pk_bf16_f32 v{PM}, v{S}, v{S+1}")
    a(f"v_cvt_pk_bf16_f32 v{PM+1}, v{S+2}, v{S+3}")
    for i in range(8):
        a(f"v_mov_b32 v{O+i}, 0")
    a("s_nop 1")
    for et in range(2):
        a(f"v_mfma_f32_16x16x32_bf16 {vr(O+4*et,4)}, {vr(VX+4*et,4)}, {vr(PT,4)}, {vr(O+4*et,4)}")
    a.nop(8)
    for et in range(2):
        a(f"v_mfma_f32_16x16x16_bf16 {vr(O+4*et,4)}, {vr(VM+2*et,2)}, {vr(PM,2)}, {vr(O+4*et,4)}")
    a("s_add_u32 s29, s29, 1")
    a.nop(4)
    load_kv()
    a.nop(6)
    OB = 52
    a(f"v_cvt_pk_bf16_f32 v{OB}, v{O}, v{O+1}")
    a(f"v_cvt_pk_bf16_f32 v{OB+1}, v{O+2}, v{O+3}")
    a(f"v_cvt_pk_bf16_f32 v{OB+2}, v{O+4}, v{O+5}")
    a(f"v_cvt_pk_bf16_f32 v{OB+3}, v{O+6}, v{O+7}")
    a("s_lshl_b32 s25, s20, 10")
    a("v_add_u32 v32, s25, v4")
    a(f"ds_write_b128 v32, v[{OB}:{OB+3}] offset:{L_OX}")
    a("s_waitcnt lgkmcnt(0)")
    a("s_barrier")
    OFR = 8
    for kb in range(4):
        a(f"ds_read_b128 v[{OFR+4*kb}:{OFR+4*kb+3}], v4 offset:{L_OX+kb*1024}")
    a("s_lshl_b32 s25, s20, 15")
    a(f"s_add_u32 s25, s25, {L_WO}")
    a("v_add_u32 v122, s25, v4")
    WB = 24
    D = 56
    for i in range(32):
        a(f"v_mov_b32 v{D+i}, 0")
    a("s_sub_u32 s25, s29, 1")
    a("s_and_b32 s25, s25, 1")
    a("s_lshl_b32 s25, s25, 18")
    a(f"s_add_u32 s33, s25, {WS['PART']}")
    a("s_lshl_b32 s25, s20, 16")
    a("s_add_u32 s34, s33, s25")
    for kb in range(4):
        a(f"ds_read_b128 v[{WB+4*kb}:{WB+4*kb+3}], v122 offset:{kb*1024}")
    for i in range(8):
        cur = WB + 16 * (i % 2)
        nxt = WB + 16 * ((i + 1) % 2)
        if i < 7:
            for kb in range(4):
                a(f"ds_read_b128 v[{nxt+4*kb}:{nxt+4*kb+3}], v122 offset:{(i+1)*4096+kb*1024}")
            a("s_waitcnt lgkmcnt(4)")
        else:
            a("s_waitcnt lgkmcnt(0)")
        for kb in range(4):
            a(f"v_mfma_f32_16x16x32_bf16 {vr(D+4*i,4)}, {vr(cur+4*kb,4)}, {vr(OFR+4*kb,4)}, {vr(D+4*i,4)}")
    a.nop(10)
    a("v_cmp_gt_u32 vcc, 8, v2")
    a("s_and_saveexec_b64 s[22:23], vcc")
    for i in range(8):
        d = D + 4 * i
        a(f"v_cvt_pk_bf16_f32 v{d}, v{d}, v{d+1}")
        a(f"v_cvt_pk_bf16_f32 v{d+1}, v{d+2}, v{d+3}")
        a(f"v_min_u32 v{d}, 0xfffffffe, v{d}")
        a(f"v_min_u32 v{d+1}, 0xfffffffe, v{d+1}")

    def stores(emit):
        ls, le = a.label("slow"), a.label("endst")
        a("s_cmp_lg_u32 s28, 0")
        a(f"s_cbranch_scc1 {ls}")
        emit("")
        a(f"s_branch {le}")
        a(f"{ls}:")
        emit(" sc1")
        a(f"{le}:")

    def e1(sc):
        for i in range(8):
            d = D + 4 * i
            a(f"s_add_u32 s25, s34, {i*8192}")
            a(f"buffer_store_dwordx2 v[{d}:{d+1}], v7, s[8:11], s25 offen{sc}")
    stores(e1)
    a("s_mov_b64 exec, s[22:23]")
    R = 8
    lp = a.label("partpoll")
    a(f"{lp}:")
    for j in range(4):
        a(f"buffer_load_dwordx2 v[{R+2*j}:{R+2*j+1}], v{RD}, s[8:11], s33 offen offset:{j*256} sc1")
    a("s_waitcnt vmcnt(0)")
    a(f"v_max3_u32 v16, v{R}, v{R+1}, v{R+2}")
    a(f"v_max3_u32 v16, v16, v{R+3}, v{R+4}")
    a(f"v_max3_u32 v16, v16, v{R+5}, v{R+6}")
    a(f"v_max_u32 v16, v16, v{R+7}")
    a("s_add_u32 s27, s27, 1")
    a(f"s_cmp_gt_u32 s27, {SPIN_MAX}")
    a(f"s_cbranch_scc1 {done}")
    a("v_cmp_eq_u32 vcc, -1, v16")
    a(f"s_cbranch_vccnz {lp}")
    A0 = 20
    for j in range(4):
        for hlf in range(2):
            src = R + 2 * j + hlf
            lo, hi = A0 + 2 * hlf, A0 + 2 * hlf + 1
            if j == 0:
                a(f"v_lshlrev_b32 v{lo}, 16, v{src}")
                a(f"v_and_b32 v{hi}, 0xffff0000, v{src}")
            else:
                a(f"v_lshlrev_b32 v24, 16, v{src}")
                a(f"v_and_b32 v25, 0xffff0000, v{src}")
                a(f"v_add_f32 v{lo}, v{lo}, v24")
                a(f"v_add_f32 v{hi}, v{hi}, v25")
    a("s_nop 1")
    for i in range(4):
        a(f"v_add_f32_dpp v{A0+i}, v{A0+i}, v{A0+i} row_ror:8 row_mask:0xf bank_mask:0xf")
    for i in range(4):
        xred_g(a, A0 + i, 24)
    a(f"v_cvt_pk_bf16_f32 v26, v{A0}, v{A0+1}")
    a(f"v_cvt_pk_bf16_f32 v27, v{A0+2}, v{A0+3}")
    a("v_min_u32 v26, 0xfffffffe, v26")
    a("v_min_u32 v27, 0xfffffffe, v27")
    a("v_mov_b32 v28, -1\nv_mov_b32 v29, -1")
    a("s_mul_i32 s25, s29, 21846")
    a("s_lshr_b32 s25, s25, 16")
    a("s_mul_i32 s25, s25, 3")
    a("s_sub_u32 s25, s29, s25")
    a("s_lshl_b32 s35, s25, 13")
    a(f"s_add_u32 s35, s35, {WS['MEMX']}")
    a("s_add_u32 s25, s25, 2")
    a("s_cmp_ge_u32 s25, 3")
    a("s_cselect_b32 s26, 3, 0")
    a("s_sub_u32 s25, s25, s26")
    a("s_lshl_b32 s36, s25, 13")
    a(f"s_add_u32 s36, s36, {WS['MEMX']}")

    def e2(sc):
        a("v_cmp_gt_u32 vcc, 8, v1")
        a("s_and_saveexec_b64 s[22:23], vcc")
        a(f"buffer_store_dwordx2 v[26:27], v{MO}, s[8:11], s35 offen{sc}")
        a(f"buffer_store_dwordx2 v[28:29], v{MO}, s[8:11], s36 offen{sc}")
        a("s_mov_b64 exec, s[22:23]")
        for j in range(4):
            a(f"buffer_store_dwordx2 v[28:29], v{RD}, s[8:11], s33 offen offset:{j*256}{sc}")
    if os.environ.get("CH_DBG"):
        def e2(sc):
            a("v_cmp_gt_u32 vcc, 8, v1")
            a("s_and_saveexec_b64 s[22:23], vcc")
            a(f"buffer_store_dwordx2 v[26:27], v{MO}, s[8:11], s35 offen{sc}")
            a("s_mov_b64 exec, s[22:23]")
        stores(e2)
        a(f"s_branch {done}")
    stores(e2)
    a("s_mov_b32 s32, s35")
    a(f"s_branch {loop}")
    a(f"{done}:")
    a("s_endpgm")
    return name, 512, 256, 163840


def main():
    a = Asm()
    kernels = []
    body = Asm()
    for fn in (k_prep, k_qkv, k_chain, k_attn, k_wo, k_ln2, k_ffn1, k_down):
        kernels.append(fn(body))
    hdr = open(os.path.join(os.path.dirname(os.path.abspath(__file__)), "header.txt")).read()
    out = hdr
    for (n, vg, grid, lds) in kernels:
        out += f"; @launch kernel={n} grid=({grid},1,1) block=(256,1,1) lds={lds}\n"
    out += '.amdgcn_target "amdgcn-amd-amdhsa--gfx950"\n.text\n'
    out += body.text()
    out += '.section .rodata,"a"\n'
    for (n, vg, grid, lds) in kernels:
        out += ".p2align 6\n" + kernel_desc(n, vg)
    path = sys.argv[1] if len(sys.argv) > 1 else f"cdna_kernels/{NAME}.s"
    open(path, "w").write(out)
    print("wrote", path, len(out))


if __name__ == "__main__":
    main()
```

```python
import os
from asmlib import *

L_MEMS, L_SX, L_OX, L_TR, L_DUMMY, L_WV = 0, 8192, 20480, 22528, 26624, 32768
SPIN_MAX = 1 << 22
SCALE_LOG2E = (128 ** -0.5) * 1.4426950408889634
import struct


def f32(x):
    return "0x%08x" % struct.unpack("<I", struct.pack("<f", x))[0]


class LdsQ:
    def __init__(self, a):
        self.a = a
        self.n = 0
        self.done = 0

    def op(self, s):
        self.a(s)
        self.n += 1
        return self.n - 1

    def wait(self, idx):
        if idx < self.done:
            return
        k = self.n - idx - 1
        if k > 15:
            k = 15
        self.a(f"s_waitcnt lgkmcnt({k})")
        self.done = self.n - k

    def wait_all(self):
        self.a("s_waitcnt lgkmcnt(0)")
        self.done = self.n


def role_assign(a, done, lds_tmp):
    a("s_getreg_b32 s21, hwreg(HW_REG_XCC_ID)")
    a("s_and_b32 s21, s21, 15")
    lbar = a.label("role_bar")
    a("s_cmp_lg_u32 s20, 0")
    a(f"s_cbranch_scc1 {lbar}")
    a("v_mov_b32 v6, 1")
    a("v_mov_b32 v7, 0")
    a("v_mov_b32 v8, 4")
    a("s_mov_b64 s[22:23], exec")
    a("s_mov_b64 exec, 1")
    lnx, lgot, lA2 = a.label("notx0"), a.label("gotrole"), a.label("takeA")
    a("s_cmp_lg_u32 s21, 0")
    a(f"s_cbranch_scc1 {lnx}")
    a("buffer_atomic_add v6, v7, s[12:15], 0 offen sc0")
    a("s_waitcnt vmcnt(0)")
    a("v_readfirstlane_b32 s24, v6")
    a("s_cmp_lt_u32 s24, 32")
    a(f"s_cbranch_scc1 {lgot}")
    a("v_mov_b32 v6, 1")
    a("buffer_atomic_add v6, v8, s[12:15], 0 offen sc0")
    a("s_waitcnt vmcnt(0)")
    a("v_readfirstlane_b32 s24, v6")
    a("s_add_u32 s24, s24, 32")
    a(f"s_branch {lgot}")
    a(f"{lnx}:")
    a("buffer_atomic_add v6, v8, s[12:15], 0 offen sc0")
    a("s_waitcnt vmcnt(0)")
    a("v_readfirstlane_b32 s24, v6")
    a("s_cmp_ge_u32 s24, 224")
    a(f"s_cbranch_scc1 {lA2}")
    a("s_add_u32 s24, s24, 32")
    a(f"s_branch {lgot}")
    a(f"{lA2}:")
    a("v_mov_b32 v6, 1")
    a("buffer_atomic_add v6, v7, s[12:15], 0 offen sc0")
    a("s_waitcnt vmcnt(0)")
    a("v_readfirstlane_b32 s24, v6")
    a(f"{lgot}:")
    a("v_mov_b32 v6, s24")
    a(f"v_mov_b32 v7, {lds_tmp}")
    a("ds_write_b32 v7, v6")
    a("s_waitcnt lgkmcnt(0)")
    a("s_mov_b64 exec, s[22:23]")
    a(f"{lbar}:")
    a("s_barrier")
    a(f"v_mov_b32 v7, {lds_tmp}")
    a("ds_read_b32 v6, v7")
    a("s_waitcnt lgkmcnt(0)")
    a("v_readfirstlane_b32 s24, v6")
    a("s_barrier")


def chain_body(a, done, fused=False):
    lsk = a.label("nopub")
    a("s_cmp_lg_u32 s20, 0")
    a(f"s_cbranch_scc1 {lsk}")
    a("s_cmp_eq_u32 s21, 0")
    a("s_cselect_b32 s25, 1, 2")
    a("v_mov_b32 v6, s25")
    a("s_lshl_b32 s25, s24, 2")
    a("s_add_u32 s25, s25, 64")
    a("v_mov_b32 v7, s25")
    a("s_mov_b64 s[22:23], exec")
    a("s_mov_b64 exec, 1")
    a("buffer_store_dword v6, v7, s[12:15], 0 offen sc1")
    a("s_mov_b64 exec, s[22:23]")
    a(f"{lsk}:")
    a("v_and_b32 v1, 63, v0")
    a("v_and_b32 v2, 15, v1")
    a("v_lshrrev_b32 v3, 4, v1")
    a("v_lshlrev_b32 v4, 4, v1")
    for mat in range(2):
        for t in range(2):
            a("s_lshl_b32 s25, s24, 3")
            a("s_lshl_b32 s26, s20, 1")
            a("s_add_u32 s25, s25, s26")
            a(f"s_add_u32 s25, s25, {mat*256+t}")
            a("s_lshl_b32 s25, s25, 14")
            a(f"s_add_u32 s25, s25, {WS['WQKV']}")
            for kb in range(16):
                idx = [256, 384][mat] + (t * 16 + kb) * 4
                if kb % 4 == 0 and kb:
                    a("s_add_u32 s25, s25, 4096")
                a(f"buffer_load_dwordx4 {reg(idx,4)}, v4, s[8:11], s25 offen offset:{(kb%4)*1024}")
    for i in range(8):
        a("s_lshl_b32 s25, s20, 3")
        a(f"s_add_u32 s25, s25, {i}")
        a("s_lshl_b32 s25, s25, 7")
        a("s_lshl_b32 s26, s24, 2")
        a("s_add_u32 s25, s25, s26")
        a("s_lshl_b32 s25, s25, 10")
        a(f"s_add_u32 s25, s25, {WS['WO']}")
        for kb in range(4):
            a(f"buffer_load_dwordx4 {vr(128+16*i+4*kb,4)}, v4, s[8:11], s25 offen offset:{kb*1024}")
    for t in range(2):
        a("s_lshl_b32 s25, s24, 3")
        a("s_lshl_b32 s26, s20, 1")
        a("s_add_u32 s25, s25, s26")
        a(f"s_add_u32 s25, s25, {512+t}")
        a("s_lshl_b32 s25, s25, 14")
        a(f"s_add_u32 s25, s25, {WS['WQKV']}")
        a("s_lshl_b32 s26, s20, 15")
        for k4 in range(4):
            a(f"s_add_u32 m0, s26, {L_WV + t*16384 + k4*4096}")
            a("s_nop 0")
            for kb in range(4):
                a(f"buffer_load_dwordx4 v4, s[8:11], s25 offen offset:{kb*1024} lds")
            a("s_add_u32 s25, s25, 4096")
    a("s_mov_b32 s27, 0")
    lp = a.label("modepoll")
    a("v_lshlrev_b32 v6, 2, v1")
    a("v_and_b32 v6, 127, v6")
    a(f"{lp}:")
    a("buffer_load_dword v7, v6, s[12:15], 0 offen offset:64 sc1")
    a("s_waitcnt vmcnt(0)")
    a("s_add_u32 s27, s27, 1")
    a(f"s_cmp_gt_u32 s27, {SPIN_MAX}")
    a(f"s_cbranch_scc1 {done}")
    a("v_cmp_eq_u32 vcc, 0, v7")
    a(f"s_cbranch_vccnz {lp}")
    a("v_cmp_eq_u32 vcc, 2, v7")
    a("s_cmp_lg_u64 vcc, 0")
    a("s_cselect_b32 s28, 1, 0")
    MEMF, QA, KA, VA, WVB = 8, 40, 48, 56, 64
    KX, VX, S = 96, 104, 112
    RD, MO, IDX, OXW = 124, 125, 126, 127
    a("v_and_b32 v8, 7, v2")
    a("v_lshrrev_b32 v9, 3, v2")
    a("v_and_b32 v10, 1, v3")
    a("v_lshrrev_b32 v11, 1, v3")
    a("v_cmp_gt_u32 s[44:45], 2, v3")
    a("v_cmp_gt_u32 vcc, 8, v2")
    a(f"v_mov_b32 v{IDX}, 0xeeee")
    a("v_mov_b32 v12, 0x4444")
    a(f"v_cndmask_b32 v{IDX}, v{IDX}, v12, vcc")
    a("v_lshlrev_b32 v13, 10, v8")
    a("v_lshl_add_u32 v13, v3, 5, v13")
    a("v_lshl_add_u32 v13, v9, 2, v13")
    a("s_and_b32 s25, s20, 1")
    a("s_lshl_b32 s25, s25, 1")
    a("v_add_u32 v14, s25, v11")
    a("v_lshl_add_u32 v14, v14, 4, v8")
    a("v_lshlrev_b32 v14, 4, v14")
    a("v_lshl_add_u32 v14, v10, 3, v14")
    a("s_lshr_b32 s25, s20, 1")
    a("s_lshl_b32 s25, s25, 10")
    a(f"s_add_u32 s25, s25, {L_OX}")
    a("v_add_u32 v14, s25, v14")
    a(f"v_add_u32 v15, {L_DUMMY}, v4")
    a(f"v_cndmask_b32 v{OXW}, v15, v14, vcc")
    a("v_lshlrev_b32 v7, 4, v2")
    a("v_lshl_add_u32 v7, v10, 3, v7")
    a("v_lshl_add_u32 v7, v11, 13, v7")
    a("s_lshl_b32 s25, s24, 8")
    a("v_add_u32 v7, s25, v7")
    a("v_lshl_add_u32 v6, v11, 4, v2")
    a("v_lshlrev_b32 v6, 4, v6")
    a("v_lshl_add_u32 v6, v10, 3, v6")
    a("s_lshl_b32 s25, s20, 10")
    a(f"s_add_u32 s25, s25, {L_TR}")
    a("v_add_u32 v6, s25, v6")
    a("v_lshrrev_b32 v16, 2, v2")
    a("v_lshl_add_u32 v16, v3, 2, v16")
    a("v_lshlrev_b32 v16, 4, v16")
    a("v_and_b32 v17, 3, v1")
    a("v_lshl_add_u32 v16, v17, 3, v16")
    a("v_add_u32 v0, s25, v16")
    a("v_lshrrev_b32 v16, 3, v1")
    a(f"v_lshlrev_b32 v{RD}, 10, v16")
    a("v_and_b32 v16, 1, v1")
    a("v_bfe_u32 v17, v1, 1, 1")
    a("v_bfe_u32 v18, v1, 2, 1")
    a("v_lshl_add_u32 v19, v18, 1, v16")
    a(f"v_lshl_add_u32 v{RD}, v19, 4, v{RD}")
    a(f"v_lshl_add_u32 v{RD}, v17, 3, v{RD}")
    a("s_lshl_b32 s25, s24, 13")
    a("s_lshl_b32 s26, s20, 6")
    a("s_add_u32 s25, s25, s26")
    a(f"v_add_u32 v{RD}, s25, v{RD}")
    a("v_lshlrev_b32 v19, 2, v17")
    a("v_lshl_add_u32 v19, v18, 3, v19")
    a(f"v_lshlrev_b32 v{MO}, 4, v19")
    a("s_lshr_b32 s25, s24, 2")
    a("s_lshl_b32 s25, s25, 10")
    a("s_and_b32 s26, s24, 3")
    a("s_lshl_b32 s26, s26, 8")
    a("s_add_u32 s25, s25, s26")
    a("s_lshl_b32 s26, s20, 2")
    a("s_add_u32 s25, s25, s26")
    a(f"v_add_u32 v{MO}, s25, v{MO}")
    a("v_lshlrev_b32 v19, 1, v10")
    a("v_add_u32 v19, v19, v11")
    a(f"v_lshl_add_u32 v{MO}, v19, 4, v{MO}")
    a("s_mov_b32 s46, 0x00550055")
    a("s_mov_b32 s47, 0x00550055")
    a("s_lshl_b32 s25, s20, 11")
    a("v_add_u32 v5, s25, v4")
    a("v_lshl_add_u32 v16, v3, 4, v8")
    a("v_lshlrev_b32 v16, 4, v16")
    a("v_lshl_add_u32 v3, v9, 3, v16")
    a("v_add_u32 v9, 1, v9")
    a("v_lshl_add_u32 v2, v9, 10, v16")
    a("s_lshl_b32 s25, s20, 15")
    a(f"s_add_u32 s25, s25, {L_WV}")
    a("v_add_u32 v1, s25, v4")
    a("s_lshl_b32 s30, s24, 2")
    a("s_add_u32 s30, s30, s20")
    a("s_lshl_b32 s31, s30, 10")
    a("s_lshl_b32 s30, s30, 11")
    a("s_mul_i32 s43, s20, 3072")
    a("s_mov_b32 s29, 0")

    def wait_kv(s_seg):
        lp = a.label("kvwait")
        a(f"s_lshr_b32 s25, {s_seg}, 3")
        a("s_lshl_b32 s25, s25, 2")
        a("s_add_u32 s25, s25, 192")
        a("v_mov_b32 v120, 0")
        a(f"{lp}:")
        a("buffer_load_dword v121, v120, s[12:15], s25 offen sc1")
        a("s_add_u32 s27, s27, 1")
        a(f"s_cmp_gt_u32 s27, {SPIN_MAX}")
        a(f"s_cbranch_scc1 {done}")
        a("s_waitcnt vmcnt(0)")
        a("v_readfirstlane_b32 s26, v121")
        a("s_cmp_lt_u32 s26, 64")
        a(f"s_cbranch_scc1 {lp}")

    def load_kv():
        sc = ""
        a("s_lshl_b32 s25, s29, 18")
        a("s_add_u32 s25, s25, s30")
        a(f"s_add_u32 s26, s25, {WS['KF']}")
        a(f"buffer_load_dwordx4 v[{KX}:{KX+3}], v4, s[8:11], s26 offen{sc}")
        a(f"buffer_load_dwordx4 v[{KX+4}:{KX+7}], v4, s[8:11], s26 offen offset:1024{sc}")
        a(f"s_add_u32 s26, s25, {WS['VF']}")
        a(f"buffer_load_dwordx4 v[{VX}:{VX+3}], v4, s[8:11], s26 offen{sc}")
        a(f"buffer_load_dwordx4 v[{VX+4}:{VX+7}], v4, s[8:11], s26 offen offset:1024{sc}")
    a("v_mov_b32 v100, v13")
    for kap in range(8):
        for q in range(4):
            a(f"buffer_load_dword v{MEMF+4*kap+q}, v100, s[16:19], 0 offen offset:{kap*128+q*8}")
    a("s_waitcnt vmcnt(0)")
    if fused:
        wait_kv("s29")
    load_kv()
    for i in range(0, 24, 2):
        a(f"v_mov_b64 v[{QA+i}:{QA+i+1}], 0")
    a("s_waitcnt vmcnt(0) lgkmcnt(0)")
    a("s_barrier")
    PROF = os.environ.get("CH_PROF")

    def stamp(i):
        if PROF:
            a("s_memtime s[50:51]")
            a("s_waitcnt lgkmcnt(0)")
            a(f"s_mov_b32 s{60+i}, s50")

    def mfma(d, x, y, c):
        a(f"v_mfma_f32_16x16x32_bf16 {d}, {x}, {y}, {c}")

    def smf(d, x, y):
        a(f"v_smfmac_f32_16x16x64_bf16 {d}, {x}, {y}, v{IDX}")

    DPP8 = "row_ror:8 row_mask:0xf bank_mask:0xf"

    def step_loop(sc):
        q = LdsQ(a)
        lq = a.label("qkv")
        loop = a.label("step")
        a(f"s_branch {lq}")
        a(f"{loop}:")
        stamp(0)
        lp = a.label("mempoll")
        a(f"{lp}:")
        a("buffer_load_dwordx4 v[8:11], v5, s[8:11], s32 offen sc1")
        a("buffer_load_dwordx4 v[12:15], v5, s[8:11], s32 offen offset:1024 sc1")
        for i in range(0, 24, 2):
            a(f"v_mov_b64 v[{QA+i}:{QA+i+1}], 0")
        a("s_add_u32 s27, s27, 1")
        a(f"s_cmp_gt_u32 s27, {SPIN_MAX}")
        a(f"s_cbranch_scc1 {done}")
        a("s_waitcnt vmcnt(0)")
        a("v_max3_u32 v16, v8, v9, v10")
        a("v_max3_u32 v17, v11, v12, v13")
        a("v_max3_u32 v16, v16, v14, v15")
        a("v_max_u32 v16, v16, v17")
        a("v_cmp_eq_u32 vcc, -1, v16")
        a(f"s_cbranch_vccnz {lp}")
        stamp(1)
        a("ds_write_b128 v5, v[8:11]")
        a("ds_write_b128 v5, v[12:15] offset:1024")
        a("s_waitcnt lgkmcnt(0)")
        a("s_barrier")
        mr = []
        for kap in range(8):
            mr.append(q.op(f"ds_read_b128 v[{MEMF+4*kap}:{MEMF+4*kap+3}], v4 offset:{L_MEMS+kap*1024}"))
        a(f"{lq}:")
        wv = {}

        def wv_read(n):
            kap, t = n >> 1, n & 1
            b = WVB + 8 * (n % 4)
            q.op(f"ds_read_b128 v[{b}:{b+3}], v1 offset:{t*16384+(2*kap)*1024}")
            wv[n] = q.op(f"ds_read_b128 v[{b+4}:{b+7}], v1 offset:{t*16384+(2*kap+1)*1024}")
        for n in range(4):
            wv_read(n)
        stamp(2)
        for kap in range(8):
            q.wait(mr[kap])
            m = vr(MEMF + 4 * kap, 4)
            for t in range(2):
                smf(vr(QA+4*t,4), m, reg(256+(t*16+2*kap)*4,8))
                smf(vr(KA+4*t,4), m, reg(384+(t*16+2*kap)*4,8))
            if kap == 1:
                a("s_and_b32 s25, s29, 1")
                a("s_lshl_b32 s25, s25, 18")
                a(f"s_add_u32 s33, s25, {WS['PART']}")
                a("s_lshl_b32 s25, s20, 16")
                a("s_add_u32 s34, s33, s25")
                a("s_add_u32 s26, s29, 1")
                a("s_mul_i32 s25, s26, 21846")
                a("s_lshr_b32 s25, s25, 16")
            if kap == 2:
                a("s_mul_i32 s25, s25, 3")
                a("s_sub_u32 s25, s26, s25")
                a("s_lshl_b32 s35, s25, 13")
                a(f"s_add_u32 s35, s35, {WS['MEMX']}")
                a("s_add_u32 s25, s25, 2")
                a("s_cmp_ge_u32 s25, 3")
                a("s_cselect_b32 s26, 3, 0")
                a("s_sub_u32 s25, s25, s26")
            if kap == 3:
                a("s_lshl_b32 s36, s25, 13")
                a(f"s_add_u32 s36, s36, {WS['MEMX']}")
                a("s_lshl_b32 s25, s29, 17")
                a("s_add_u32 s25, s25, s31")
                a(f"s_add_u32 s37, s25, {WS['KMF']}")
                a(f"s_add_u32 s38, s25, {WS['VMF']}")
                a(f"v_add_u32 v123, s43, v4")
            if kap == 4:
                for i in range(4):
                    a(f"s_add_u32 s{52+i}, s34, {i*16384}")
            if kap == 6:
                lz = a.label("noreset")
                a("s_cmp_eq_u32 s29, 0")
                a(f"s_cbranch_scc1 {lz}")
                a("v_mov_b32 v120, -1")
                a("v_mov_b32 v121, -1")
                for j in range(4):
                    a(f"buffer_store_dwordx2 v[120:121], v{RD}, s[8:11], s39 offen offset:{j*256}{sc}")
                a("s_mov_b64 exec, s[46:47]")
                a(f"buffer_store_dword v120, v{MO}, s[8:11], s49 offen{sc}")
                a("s_mov_b64 exec, -1")
                a(f"{lz}:")
            if kap == 5:
                if fused:
                    lk = a.label("kvok")
                    a("s_add_u32 s92, s29, 2")
                    a("s_and_b32 s25, s92, 7")
                    a("s_cmp_lg_u32 s25, 0")
                    a(f"s_cbranch_scc1 {lk}")
                    a("s_cmp_ge_u32 s92, 64")
                    a(f"s_cbranch_scc1 {lk}")
                    wait_kv("s92")
                    a(f"{lk}:")
                a("v_and_b32 v120, 0xf0, v4")
                a("v_lshlrev_b32 v120, 3, v120")
                a("v_bfe_u32 v121, v4, 8, 1")
                a(f"v_lshl_add_u32 v120, v121, 24, v120")
                a("s_add_u32 s25, s29, 2")
                a("s_lshl_b32 s25, s25, 18")
                a("s_add_u32 s25, s25, s30")
                a(f"s_add_u32 s25, s25, {WS['KF']}")
                a(f"s_mov_b32 m0, {L_DUMMY+2048}")
                a("s_nop 0")
                a("buffer_load_dword v120, s[8:11], s25 offen lds")

        def vop(n):
            kap, t = n >> 1, n & 1
            q.wait(wv[n])
            smf(vr(VA+4*t,4), vr(MEMF+4*kap,4), vr(WVB+8*(n%4),8))
            if n + 4 < 16:
                wv_read(n + 4)
        for n in range(4):
            vop(n)
        stamp(3)
        for i in range(4):
            a(f"v_permlane32_swap_b32 v{QA+i}, v{QA+4+i}")
            a(f"v_permlane32_swap_b32 v{KA+i}, v{KA+4+i}")
            vop(4 + i)
        for b in (QA, KA):
            a(f"v_pk_add_f32 v[{b}:{b+1}], v[{b}:{b+1}], v[{b+4}:{b+5}]")
            a(f"v_pk_add_f32 v[{b+2}:{b+3}], v[{b+2}:{b+3}], v[{b+6}:{b+7}]")
        for b in (QA, KA):
            a(f"v_cvt_pk_bf16_f32 v{b+4}, v{b}, v{b+1}")
            a(f"v_cvt_pk_bf16_f32 v{b+5}, v{b+2}, v{b+3}")
        w1 = q.op(f"ds_write_b64 v6, v[{QA+4}:{QA+5}]")
        w2 = q.op(f"ds_write_b64 v6, v[{KA+4}:{KA+5}] offset:512")
        vop(8)
        vop(9)
        q.wait(w2)
        QB, KB = QA, KA
        q.op(f"ds_read_b64_tr_b16 v[{QB}:{QB+1}], v0")
        q.op(f"ds_read_b64_tr_b16 v[{QB+2}:{QB+3}], v0 offset:256")
        q.op(f"ds_read_b64_tr_b16 v[{KB}:{KB+1}], v0 offset:512")
        r4 = q.op(f"ds_read_b64_tr_b16 v[{KB+2}:{KB+3}], v0 offset:768")
        vop(10)
        vop(11)
        q.wait(r4)
        mfma(vr(S,4), vr(KB,4), vr(QB,4), "0")
        mfma(vr(S+4,4), vr(KX,4), vr(QB,4), "0")
        a(f"v_mov_b32 v{QA+4}, v123")
        mfma(vr(S+8,4), vr(KX+4,4), vr(QB,4), "0")
        a(f"buffer_store_dwordx4 v[{KB}:{KB+3}], v4, s[8:11], s37 offen")
        vop(12)
        vop(13)
        vop(14)
        vop(15)
        a("s_nop 3")
        for t in range(3):
            q.op(f"ds_write_b128 v{QA+4}, v[{S+4*t}:{S+4*t+3}] offset:{L_SX+t*1024}")
        q.wait_all()
        a("s_barrier")
        stamp(4)
        X = 8
        for k in range(4):
            q.op(f"ds_read_b128 v[{X+6*k}:{X+6*k+3}], v2 offset:{L_SX+k*3072}")
            q.op(f"ds_read_b64 v[{X+6*k+4}:{X+6*k+5}], v3 offset:{L_SX+k*3072}")
        for i in range(4):
            a(f"v_permlane32_swap_b32 v{VA+i}, v{VA+4+i}")
        a(f"v_pk_add_f32 v[{VA}:{VA+1}], v[{VA}:{VA+1}], v[{VA+4}:{VA+5}]")
        a(f"v_pk_add_f32 v[{VA+2}:{VA+3}], v[{VA+2}:{VA+3}], v[{VA+6}:{VA+7}]")
        a(f"v_cvt_pk_bf16_f32 v{VA}, v{VA}, v{VA+1}")
        a(f"v_cvt_pk_bf16_f32 v{VA+1}, v{VA+2}, v{VA+3}")
        a(f"v_mov_b32 v{VA+4}, v{VA}")
        a(f"v_mov_b32 v{VA+5}, v{VA+1}")
        a(f"v_mov_b64 v[{VA+2}:{VA+3}], 0")
        a(f"v_mov_b64 v[{VA+6}:{VA+7}], 0")
        a(f"v_permlane32_swap_b32 v{VA}, v{VA+4}")
        a(f"v_permlane32_swap_b32 v{VA+1}, v{VA+5}")
        a("v_lshrrev_b32 v46, 1, v4")
        a(f"buffer_store_dwordx2 v[{VA}:{VA+1}], v46, s[8:11], s38 offen")
        a(f"buffer_store_dwordx2 v[{VA+4}:{VA+5}], v46, s[8:11], s38 offen offset:512")
        a("s_cmp_eq_u32 s29, 63")
        a(f"s_cbranch_scc1 {done}")
        T = S
        q.wait_all()
        for i in range(0, 6, 2):
            a(f"v_pk_add_f32 v[{X+i}:{X+i+1}], v[{X+i}:{X+i+1}], v[{X+6+i}:{X+7+i}]")
            a(f"v_pk_add_f32 v[{X+12+i}:{X+13+i}], v[{X+12+i}:{X+13+i}], v[{X+18+i}:{X+19+i}]")
        for i in range(0, 6, 2):
            a(f"v_pk_add_f32 v[{T+i}:{T+i+1}], v[{X+i}:{X+i+1}], v[{X+12+i}:{X+13+i}]")
        a("v_mov_b32 v40, 0xff800000")
        a(f"v_cndmask_b32 v{T+4}, v40, v{T+4}, s[44:45]")
        a(f"v_cndmask_b32 v{T+5}, v40, v{T+5}, s[44:45]")
        a(f"v_max3_f32 v40, v{T}, v{T+1}, v{T+2}")
        a(f"v_max3_f32 v41, v{T+3}, v{T+4}, v{T+5}")
        a("v_max_f32 v40, v40, v41")
        a(f"v_mov_b32 v42, {f32(SCALE_LOG2E)}")
        a(f"v_mov_b32 v43, {f32(SCALE_LOG2E)}")
        a(f"v_max_f32_dpp v40, v40, v40 {DPP8}")
        D = WVB
        zi = [0]

        def zero2():
            if zi[0] < 32:
                a(f"v_mov_b64 v[{D+zi[0]}:{D+zi[0]+1}], 0")
                zi[0] += 2
        for sw in ("v_permlane16_swap_b32", "v_permlane32_swap_b32"):
            a("v_mov_b32 v41, v40")
            zero2(); zero2()
            a(f"{sw} v40, v41")
            a("v_max_f32 v40, v40, v41")
        a(f"v_mul_f32 v40, {f32(-SCALE_LOG2E)}, v40")
        a("v_mov_b32 v41, v40")
        for i in range(0, 6, 2):
            a(f"v_pk_fma_f32 v[{T+i}:{T+i+1}], v[{T+i}:{T+i+1}], v[42:43], v[40:41]")
        for i in range(6):
            a(f"v_exp_f32 v{T+i}, v{T+i}")
        PT, PM = 48, 52
        a(f"v_mov_b64 v[{PM+2}:{PM+3}], 0")
        a(f"v_cvt_pk_bf16_f32 v{PT}, v{T}, v{T+1}")
        a(f"v_cvt_pk_bf16_f32 v{PT+1}, v{T+2}, v{T+3}")
        a(f"v_cvt_pk_bf16_f32 v{PM}, v{T+4}, v{T+5}")
        a(f"v_pk_add_f32 v[40:41], v[{T}:{T+1}], v[{T+2}:{T+3}]")
        a(f"v_mov_b32_dpp v{PT+2}, v{PT} {DPP8}")
        a(f"v_mov_b32_dpp v{PT+3}, v{PT+1} {DPP8}")
        a(f"v_mov_b32_dpp v{PM+1}, v{PM} {DPP8}")
        a(f"v_pk_add_f32 v[40:41], v[40:41], v[{T+4}:{T+5}]")
        O = 112
        a("v_add_f32 v40, v40, v41")
        mfma(vr(O,4), vr(VX,4), vr(PT,4), "0")
        zero2()
        mfma(vr(O+4,4), vr(VX+4,4), vr(PT,4), "0")
        zero2()
        mfma(vr(O,4), vr(VA,4), vr(PM,4), vr(O,4))
        zero2()
        mfma(vr(O+4,4), vr(VA+4,4), vr(PM,4), vr(O+4,4))
        a(f"v_add_f32_dpp v40, v40, v40 {DPP8}")
        for sw in ("v_permlane16_swap_b32", "v_permlane32_swap_b32"):
            a("v_mov_b32 v41, v40")
            zero2(); zero2()
            a(f"{sw} v40, v41")
            a("v_add_f32 v40, v40, v41")
        a("v_rcp_f32 v40, v40")
        a("s_add_u32 s29, s29, 1")
        a("v_mov_b32 v41, v40")
        for i in range(0, 8, 2):
            a(f"v_pk_mul_f32 v[{O+i}:{O+i+1}], v[{O+i}:{O+i+1}], v[40:41]")
        a(f"v_cvt_pk_bf16_f32 v120, v{O}, v{O+1}")
        a(f"v_cvt_pk_bf16_f32 v121, v{O+4}, v{O+5}")
        a(f"v_cvt_pk_bf16_f32 v122, v{O+2}, v{O+3}")
        a(f"v_cvt_pk_bf16_f32 v123, v{O+6}, v{O+7}")
        q.op(f"ds_write_b64 v{OXW}, v[120:121]")
        q.op(f"ds_write_b64 v{OXW}, v[122:123] offset:128")
        q.wait_all()
        a("s_barrier")
        stamp(5)
        OFR = 40
        q.op(f"ds_read_b128 v[{OFR}:{OFR+3}], v4 offset:{L_OX}")
        q.op(f"ds_read_b128 v[{OFR+4}:{OFR+7}], v4 offset:{L_OX+1024}")
        while zi[0] < 32:
            zero2()
        load_kv()
        q.wait_all()

        def wo(T_):
            for kap in range(2):
                smf(vr(D+4*T_,4), vr(OFR+4*kap,4), vr(128+16*T_+8*kap,8))

        def post(p, inter=()):
            x, y = D + 8 * p, D + 8 * p + 4
            inter = list(inter)
            for i in range(4):
                a(f"v_permlane32_swap_b32 v{x+i}, v{y+i}")
                if i % 2 == 1 and inter:
                    wo(inter.pop(0))
            a(f"v_pk_add_f32 v[{x}:{x+1}], v[{x}:{x+1}], v[{y}:{y+1}]")
            a(f"v_pk_add_f32 v[{x+2}:{x+3}], v[{x+2}:{x+3}], v[{y+2}:{y+3}]")
            a(f"v_cvt_pk_bf16_f32 v{x}, v{x}, v{x+1}")
            a(f"v_cvt_pk_bf16_f32 v{x+1}, v{x+2}, v{x+3}")
            a(f"v_min_u32 v{x}, 0xfffffffe, v{x}")
            a(f"v_min_u32 v{x+1}, 0xfffffffe, v{x+1}")
            a(f"buffer_store_dwordx2 v[{x}:{x+1}], v7, s[8:11], s{52+p} offen{sc}")
        for T_ in range(6):
            wo(T_)
        post(0, (6, 7))
        post(1)
        post(2)
        post(3)
        stamp(6)
        stamp(7)
        R = 8
        lp = a.label("partpoll")
        a(f"{lp}:")
        for j in range(4):
            a(f"buffer_load_dwordx2 v[{R+2*j}:{R+2*j+1}], v{RD}, s[8:11], s33 offen offset:{j*256} sc1")
        a("s_add_u32 s27, s27, 1")
        a(f"s_cmp_gt_u32 s27, {SPIN_MAX}")
        a(f"s_cbranch_scc1 {done}")
        a("s_waitcnt vmcnt(0)")
        a(f"v_max3_u32 v16, v{R}, v{R+1}, v{R+2}")
        a(f"v_max3_u32 v17, v{R+3}, v{R+4}, v{R+5}")
        a(f"v_max3_u32 v16, v16, v{R+6}, v{R+7}")
        a(f"v_max_u32 v16, v16, v17")
        a("v_cmp_eq_u32 vcc, -1, v16")
        a(f"s_cbranch_vccnz {lp}")
        stamp(8)
        for j in range(4):
            for hlf in range(2):
                src = R + 2 * j + hlf
                a(f"v_lshlrev_b32 v{20+4*j+2*hlf}, 16, v{src}")
                a(f"v_and_b32 v{21+4*j+2*hlf}, 0xffff0000, v{src}")
        for hlf in range(2):
            a(f"v_pk_add_f32 v[{20+2*hlf}:{21+2*hlf}], v[{20+2*hlf}:{21+2*hlf}], v[{24+2*hlf}:{25+2*hlf}]")
            a(f"v_pk_add_f32 v[{28+2*hlf}:{29+2*hlf}], v[{28+2*hlf}:{29+2*hlf}], v[{32+2*hlf}:{33+2*hlf}]")
        for hlf in range(2):
            a(f"v_pk_add_f32 v[{20+2*hlf}:{21+2*hlf}], v[{20+2*hlf}:{21+2*hlf}], v[{28+2*hlf}:{29+2*hlf}]")
        A0 = 20
        a("s_nop 0")
        a("v_permlane32_swap_b32 v20, v21")
        a("v_permlane32_swap_b32 v22, v23")
        a("v_add_f32 v20, v20, v21")
        a("v_add_f32 v22, v22, v23")
        a("s_mov_b32 s39, s33")
        a("s_mov_b32 s49, s36")
        a("v_permlane16_swap_b32 v20, v22")
        a("v_add_f32 v20, v20, v22")
        a("s_nop 1")
        a(f"v_add_f32_dpp v20, v20, v20 {DPP8}")
        a("s_nop 1")
        a("v_mov_b32_dpp v21, v20 quad_perm:[1,0,3,2] row_mask:0xf bank_mask:0xf")
        a("v_cvt_pk_bf16_f32 v20, v20, v21")
        a("v_min_u32 v20, 0xfffffffe, v20")
        a("s_mov_b64 exec, s[46:47]")
        a(f"buffer_store_dword v20, v{MO}, s[8:11], s35 offen{sc}")
        a("s_mov_b64 exec, -1")
        stamp(9)
        if PROF:
            lsk = a.label("noprof")
            a("s_cmp_lg_u32 s29, 21")
            a(f"s_cbranch_scc1 {lsk}")
            for i in range(10):
                a(f"v_mov_b32 v30, s{60+i}")
                a("s_lshl_b32 s25, s24, 2")
                a("s_add_u32 s25, s25, s20")
                a("s_lshl_b32 s25, s25, 6")
                a(f"s_add_u32 s25, s25, {120*MB + 4*i}")
                a("v_mov_b32 v31, 0")
                a("buffer_store_dword v30, v31, s[8:11], s25 offen")
            a(f"{lsk}:")
        a("s_mov_b32 s32, s35")
        a(f"s_branch {loop}")

    lslow = a.label("slowloop")
    a("s_cmp_lg_u32 s28, 0")
    a(f"s_cbranch_scc1 {lslow}")
    step_loop("")
    a(f"{lslow}:")
    step_loop(" sc1")


def k_chain3(a):
    name = "chain_kernel"
    kernel_header(a, name)
    done = a.label("chain_done")
    a("s_cmp_ge_u32 s2, 256")
    a(f"s_cbranch_scc1 {done}")
    a("v_lshrrev_b32 v1, 6, v0")
    a("s_nop 0")
    a("v_readfirstlane_b32 s20, v1")
    load_srd(a, 8, "ws", None)
    load_srd(a, 12, "dbg", None)
    load_srd(a, 16, "mem0", None)
    role_assign(a, done, L_DUMMY)
    a("s_cmp_ge_u32 s24, 32")
    a(f"s_cbranch_scc1 {done}")
    chain_body(a, done)
    a(f"{done}:")
    a("s_endpgm")
    return name, 512, 256, 163840
```

```python
import sys, os
sys.path.insert(0, os.path.dirname(os.path.abspath(__file__)))
from asmlib import *

NAME = "sequential_preLN__memory_aug_recurrent_mem_tr__glu_gated_geglu__prompt"
SCALE_LOG2E = (128 ** -0.5) * 1.4426950408889634
import struct


def f32(x):
    return "0x%08x" % struct.unpack("<I", struct.pack("<f", x))[0]


def lane_setup(a, vl=1, vr_=2, vg=3, vl16=4):
    a(f"v_and_b32 v{vl}, 63, v0")
    a(f"v_and_b32 v{vr_}, 15, v{vl}")
    a(f"v_lshrrev_b32 v{vg}, 4, v{vl}")
    a(f"v_lshlrev_b32 v{vl16}, 4, v{vl}")


def wave_id(a, sdst, vtmp):
    a(f"v_lshrrev_b32 v{vtmp}, 6, v0")
    a("s_nop 0")
    a(f"v_readfirstlane_b32 s{sdst}, v{vtmp}")


def xred_g(a, x, t, op="v_add_f32"):
    a(f"v_mov_b32 v{t}, v{x}")
    a("s_nop 1")
    a(f"v_permlane16_swap_b32 v{x}, v{t}")
    a(f"{op} v{x}, v{x}, v{t}")
    a(f"v_mov_b32 v{t}, v{x}")
    a("s_nop 1")
    a(f"v_permlane32_swap_b32 v{x}, v{t}")
    a(f"{op} v{x}, v{x}, v{t}")


def ln_tile(a, srd_src, s_src, srd_ws, s_dst):
    a("v_lshlrev_b32 v5, 10, v2")
    a("v_lshl_add_u32 v5, v3, 4, v5")
    for kb in range(16):
        a(f"buffer_load_dwordx4 v[{16+4*kb}:{19+4*kb}], v5, s[{srd_src}:{srd_src+3}], s{s_src} offen offset:{kb*64}")
    a("s_waitcnt vmcnt(0)")
    a("v_mov_b32 v6, 0")
    a("v_mov_b32 v9, 0")
    for d in range(16, 80):
        a(f"v_lshlrev_b32 v7, 16, v{d}")
        a(f"v_and_b32 v8, 0xffff0000, v{d}")
        a("v_add_f32 v6, v6, v7")
        a("v_add_f32 v9, v9, v8")
    a("v_add_f32 v6, v6, v9")
    xred_g(a, 6, 7)
    a(f"v_mul_f32 v6, {f32(1.0/512)}, v6")
    a("v_mov_b32 v10, 0")
    a("v_mov_b32 v9, 0")
    for d in range(16, 80):
        a(f"v_lshlrev_b32 v7, 16, v{d}")
        a(f"v_and_b32 v8, 0xffff0000, v{d}")
        a("v_sub_f32 v7, v7, v6")
        a("v_sub_f32 v8, v8, v6")
        a("v_fmac_f32 v10, v7, v7")
        a("v_fmac_f32 v9, v8, v8")
    a("v_add_f32 v10, v10, v9")
    xred_g(a, 10, 7)
    a(f"v_mov_b32 v11, {f32(1e-5)}")
    a(f"v_fmac_f32 v11, {f32(1.0/512)}, v10")
    a("v_rsq_f32 v11, v11")
    a("s_nop 0")
    for d in range(16, 80):
        a(f"v_lshlrev_b32 v7, 16, v{d}")
        a(f"v_and_b32 v8, 0xffff0000, v{d}")
        a("v_sub_f32 v7, v7, v6")
        a("v_sub_f32 v8, v8, v6")
        a("v_mul_f32 v7, v7, v11")
        a("v_mul_f32 v8, v8, v11")
        a(f"v_cvt_pk_bf16_f32 v{d}, v7, v8")
    for kb in range(16):
        a(f"buffer_store_dwordx4 v[{16+4*kb}:{19+4*kb}], v4, s[{srd_ws}:{srd_ws+3}], s{s_dst} offen")
        if kb < 15:
            a(f"s_add_u32 s{s_dst}, s{s_dst}, 1024")


def k_prep(a):
    name = "prep_kernel"
    kernel_header(a, name)
    done = a.label("prep_done")
    a("s_cmp_ge_u32 s2, 1024")
    a(f"s_cbranch_scc1 {done}")
    a("s_load_dwordx16 s[36:51], s[0:1], 0")
    a("s_load_dwordx8 s[52:59], s[0:1], 64")
    wave_id(a, 3, 1)
    a("s_lshl_b32 s4, s2, 2")
    a("s_add_u32 s3, s3, s4")
    lane_setup(a)
    load_srd(a, 8, "ws", None)
    load_srd(a, 12, "x", None)
    skip = a.label("noinit")
    a(f"s_cmp_ge_u32 s3, {EXCH_BYTES//1024}")
    a(f"s_cbranch_scc1 {skip}")
    a("v_mov_b32 v16, -1\nv_mov_b32 v17, -1\nv_mov_b32 v18, -1\nv_mov_b32 v19, -1")
    a("s_lshl_b32 s4, s3, 10")
    a(f"s_add_u32 s4, s4, {WS['PART']}")
    a("buffer_store_dwordx4 v[16:19], v4, s[8:11], s4 offen")
    a(f"{skip}:")
    skip = a.label("noln")
    a("s_cmp_ge_u32 s3, 128")
    a(f"s_cbranch_scc1 {skip}")
    a("s_lshl_b32 s4, s3, 14")
    a(f"s_add_u32 s5, s4, {WS['XN']}")
    ln_tile(a, 12, 4, 8, 5)
    a(f"{skip}:")
    a("s_mov_b32 s20, s3")
    loop = a.label("rl_loop")
    common = a.label("rl_common")
    cB, cC, cD = a.label("cB"), a.label("cC"), a.label("cD")
    a(f"{loop}:")
    a("s_cmp_ge_u32 s20, 20608")
    a(f"s_cbranch_scc1 {done}")
    a("s_mov_b32 s27, 0x00020000")
    a("s_cmp_ge_u32 s20, 12288")
    a(f"s_cbranch_scc1 {cB}")
    a("s_lshr_b32 s33, s20, 12")
    a("s_cmp_eq_u32 s33, 1")
    a("s_cselect_b32 s24, s42, s40")
    a("s_cselect_b32 s25, s43, s41")
    a("s_cmp_eq_u32 s33, 2")
    a("s_cselect_b32 s24, s44, s24")
    a("s_cselect_b32 s25, s45, s25")
    a(f"s_mov_b32 s26, {SIZE['wq']}")
    a("s_mov_b32 s28, 8192")
    a("s_and_b32 s29, s20, 15")
    a("s_lshl_b32 s29, s29, 5")
    a("s_lshr_b32 s30, s20, 4")
    a("s_and_b32 s30, s30, 255")
    a("s_lshl_b32 s30, s30, 4")
    a("s_mov_b32 s31, 0")
    a("s_lshl_b32 s32, s20, 10")
    a(f"s_add_u32 s32, s32, {WS['WQKV']}")
    a(f"s_branch {common}")
    a(f"{cB}:")
    a("s_cmp_ge_u32 s20, 16384")
    a(f"s_cbranch_scc1 {cC}")
    a("s_sub_u32 s33, s20, 12288")
    a("s_mov_b32 s24, s46\ns_mov_b32 s25, s47")
    a(f"s_mov_b32 s26, {SIZE['wo']}")
    a("s_mov_b32 s28, 1024")
    a("s_and_b32 s29, s33, 127")
    a("s_lshl_b32 s29, s29, 5")
    a("s_lshr_b32 s30, s33, 7")
    a("s_lshl_b32 s30, s30, 4")
    a("s_mov_b32 s31, 1")
    a("s_lshl_b32 s32, s33, 10")
    a(f"s_add_u32 s32, s32, {WS['WO']}")
    a(f"s_branch {common}")
    a(f"{cC}:")
    a("s_cmp_ge_u32 s20, 19200")
    a(f"s_cbranch_scc1 {cD}")
    a("s_sub_u32 s33, s20, 16384")
    a("s_cmp_ge_u32 s33, 1408")
    a("s_cselect_b32 s24, s54, s52")
    a("s_cselect_b32 s25, s55, s53")
    a(f"s_mov_b32 s32, {WS['WG']}")
    a(f"s_cselect_b32 s32, {WS['WU']}, s32")
    a("s_cselect_b32 s34, 1408, 0")
    a("s_sub_u32 s33, s33, s34")
    a("s_mov_b32 s28, 2752")
    a("s_and_b32 s29, s33, 15")
    a("s_lshl_b32 s29, s29, 5")
    a("s_lshr_b32 s30, s33, 4")
    a("s_cmp_lt_u32 s30, 86")
    a(f"s_cselect_b32 s26, {SIZE['wg']}, 0")
    a("s_lshl_b32 s30, s30, 4")
    a("s_mov_b32 s31, 0")
    a("s_lshl_b32 s33, s33, 10")
    a("s_add_u32 s32, s32, s33")
    a(f"s_branch {common}")
    a(f"{cD}:")
    a("s_sub_u32 s33, s20, 19200")
    a("s_mov_b32 s24, s56\ns_mov_b32 s25, s57")
    a("s_mul_i32 s30, s33, 1490")
    a("s_lshr_b32 s30, s30, 16")
    a("s_mul_i32 s34, s30, 44")
    a("s_sub_u32 s29, s33, s34")
    a("s_cmp_lt_u32 s29, 43")
    a(f"s_cselect_b32 s26, {SIZE['wd']}, 0")
    a("s_lshl_b32 s29, s29, 5")
    a("s_lshl_b32 s30, s30, 4")
    a("s_mov_b32 s28, 1024")
    a("s_mov_b32 s31, 1")
    a("s_lshl_b32 s32, s33, 10")
    a(f"s_add_u32 s32, s32, {WS['WD']}")
    a(f"{common}:")
    a("s_and_b32 s25, s25, 0xffff")
    a("s_sub_u32 s33, 3, s31")
    a("v_lshlrev_b32 v6, s33, v3")
    a("v_add_u32 v6, s29, v6")
    a("v_mul_lo_u32 v6, v6, s28")
    a("v_add_u32 v7, s30, v2")
    a("v_lshl_add_u32 v6, v7, 1, v6")
    a("s_mul_i32 s33, s31, 12")
    for j in range(8):
        if j < 4:
            a(f"s_mul_i32 s{60+j}, s28, {j}")
        else:
            a(f"s_add_u32 s34, s33, {j}")
            a(f"s_mul_i32 s{60+j}, s28, s34")
    for j in range(8):
        a(f"buffer_load_ushort v{8+j}, v6, s[24:27], s{60+j} offen")
    a("s_waitcnt vmcnt(0)")
    for j in range(4):
        a(f"v_lshl_or_b32 v{16+j}, v{9+2*j}, 16, v{8+2*j}")
    a("buffer_store_dwordx4 v[16:19], v4, s[8:11], s32 offen")
    a("s_add_u32 s20, s20, 4096")
    a(f"s_branch {loop}")
    a(f"{done}:")
    a("s_endpgm")
    return name, 80, 1024, 0


def k_ln2(a):
    name = "ln2_kernel"
    kernel_header(a, name)
    done = a.label("ln2_done")
    a("s_cmp_ge_u32 s2, 32")
    a(f"s_cbranch_scc1 {done}")
    wave_id(a, 3, 1)
    a("s_lshl_b32 s4, s2, 2")
    a("s_add_u32 s3, s3, s4")
    lane_setup(a)
    load_srd(a, 8, "ws", None)
    a("s_lshl_b32 s4, s3, 14")
    a(f"s_add_u32 s5, s4, {WS['HN']}")
    a(f"s_add_u32 s4, s4, {WS['H']}")
    ln_tile(a, 8, 4, 8, 5)
    a(f"{done}:")
    a("s_endpgm")
    return name, 80, 32, 0


class G:
    pass


def gemm_core(a, name, MT, NT, KG, NST, a_base, a_stride, bmap, b_stride, orient, epilogue, a_sc="", lead_barrier=False):
    MTw, NTw = MT // 2, NT // 2
    g = G()
    g.MTw, g.NTw = MTw, NTw
    ACC = 16
    FA = ACC + MTw * NTw * 4
    FB = FA + MTw * 4
    g.vtop = FB + NTw * 4
    g.acc = lambda mi, ni: ACC + (mi * NTw + ni) * 4
    a("s_lshr_b32 s23, s20, 1")
    a("s_and_b32 s24, s20, 1")
    nqa, nqb = MT // 4, NT // 4
    nq = nqa + nqb
    SG = 28
    SL = SG + nq
    for q in range(nqa):
        a(f"s_add_u32 s60, s21, s20")
        a(f"s_add_u32 s60, s60, {4*q}")
        a(f"s_mul_i32 s60, s60, {a_stride}")
        a(f"s_add_u32 s{SG+q}, s60, {a_base}")
    for q in range(nqb):
        bc, tc = bmap(q)
        a(f"s_add_u32 s60, s22, s20")
        a(f"s_add_u32 s60, s60, {tc}")
        a(f"s_mul_i32 s60, s60, {b_stride}")
        a(f"s_add_u32 s{SG+nqa+q}, s60, {bc}")
    for q in range(nq):
        a(f"s_add_u32 s60, s20, {4*q}")
        a(f"s_mul_i32 s{SL+q}, s60, {KG*1024}")
    STG = (MT + NT) * KG * 1024
    g.lds = 3 * STG
    a(f"s_mul_i32 s60, s23, {MTw*KG*1024}")
    a("v_add_u32 v5, s60, v4")
    a(f"s_mul_i32 s60, s24, {NTw*KG*1024}")
    a(f"s_add_u32 s60, s60, {MT*KG*1024}")
    a("v_add_u32 v6, s60, v4")
    for i in range(0, MTw * NTw * 4, 2):
        a(f"v_mov_b64 v[{ACC+i}:{ACC+i+1}], 0")
    if lead_barrier:
        a("s_barrier")

    def issue(s_stage):
        for q in range(nq):
            a(f"s_add_u32 m0, {s_stage}, s{SL+q}")
            a("s_nop 0")
            sc = a_sc if q < nqa else ""
            for kg in range(KG):
                a(f"buffer_load_dwordx4 v4, s[8:11], s{SG+q} offen offset:{kg*1024}{sc} lds")
            a(f"s_add_u32 s{SG+q}, s{SG+q}, {KG*1024}")

    a("s_mov_b32 s26, 0")
    issue("s26")
    a(f"s_mov_b32 s26, {STG}")
    issue("s26")
    a("s_mov_b32 s26, 0")
    a(f"s_mov_b32 s27, {2*STG}")
    a("s_mov_b32 s25, 0")

    def body(o):
        loop = a.label(name + "_loop")
        a(f"{loop}:")
        a(f"s_waitcnt vmcnt({nq*KG})")
        a("s_barrier")
        issue("s27")
        a("v_add_u32 v7, s26, v5")
        a("v_add_u32 v8, s26, v6")
        for kg in range(KG):
            for mi in range(MTw):
                a(f"ds_read_b128 v[{FA+4*mi}:{FA+4*mi+3}], v7 offset:{(mi*KG+kg)*1024}")
            for ni in range(NTw):
                a(f"ds_read_b128 v[{FB+4*ni}:{FB+4*ni+3}], v8 offset:{(ni*KG+kg)*1024}")
            a("s_waitcnt lgkmcnt(0)")
            for mi in range(MTw):
                for ni in range(NTw):
                    c = g.acc(mi, ni)
                    fa, fb = vr(FA + 4 * mi, 4), vr(FB + 4 * ni, 4)
                    if o == 'nm':
                        a(f"v_mfma_f32_16x16x32_bf16 {vr(c,4)}, {fb}, {fa}, {vr(c,4)}")
                    else:
                        a(f"v_mfma_f32_16x16x32_bf16 {vr(c,4)}, {fa}, {fb}, {vr(c,4)}")
        a("s_mov_b32 s27, s26")
        a(f"s_add_u32 s26, s26, {STG}")
        a(f"s_cmp_ge_u32 s26, {3*STG}")
        a("s_cselect_b32 s26, 0, s26")
        a("s_add_u32 s25, s25, 1")
        a(f"s_cmp_lt_u32 s25, {NST}")
        a(f"s_cbranch_scc1 {loop}")
        a("s_waitcnt vmcnt(0)")
        a.nop(10)
        epilogue(a, g, o)

    fin = a.label(name + "_fin")
    if callable(orient):
        orient(a, body, fin)
    else:
        body(orient)
    a(f"{fin}:")
    return g


def gemm(a, name, nwg, MT, NT, KG, NST, a_base, a_stride, bmap, b_stride, tile_of_wg, orient, epilogue,
         pre=None):
    kernel_header(a, name)
    done = a.label(name + "_done")
    a(f"s_cmp_ge_u32 s2, {nwg}")
    a(f"s_cbranch_scc1 {done}")
    wave_id(a, 20, 1)
    lane_setup(a)
    load_srd(a, 8, "ws", None)
    tile_of_wg(a)
    if pre:
        pre(a)
    g = gemm_core(a, name, MT, NT, KG, NST, a_base, a_stride, bmap, b_stride, orient, epilogue)
    a(f"{done}:")
    a("s_endpgm")
    return name, g.vtop + 8, nwg, g.lds


def k_qkv(a, fused=False):
    def tile_of_wg(a):
        a("s_and_b32 s21, s2, 7")
        a("s_lshl_b32 s21, s21, 4")
        a("s_lshr_b32 s70, s2, 3")
        a("s_lshl_b32 s22, s70, 3")

    SC = " sc1" if fused else ""

    def orient(a, body, done):
        lv = a.label("qkv_v")
        a("s_cmp_ge_u32 s70, 64")
        a(f"s_cbranch_scc1 {lv}")
        body('nm')
        a(f"s_branch {done}")
        a(f"{lv}:")
        body('mn')

    def epi(a, g, o):
        T = g.vtop
        a("s_and_b32 s71, s70, 31")
        if o == 'nm':
            a("s_cmp_ge_u32 s70, 32")
            a(f"s_mov_b32 s72, {WS['QF']}")
            a(f"s_cselect_b32 s72, {WS['KF']}, s72")
        else:
            a(f"s_mov_b32 s72, {WS['VF']}")
        a("s_lshl_b32 s73, s23, 3")
        a("s_add_u32 s73, s73, s21")
        a("s_lshr_b32 s73, s73, 1")
        a("s_lshl_b32 s73, s73, 5")
        a("s_add_u32 s73, s73, s71")
        a("s_lshl_b32 s73, s73, 2")
        a("s_lshl_b32 s74, s24, 1")
        a("s_add_u32 s73, s73, s74")
        a("s_lshl_b32 s73, s73, 11")
        a("s_add_u32 s73, s73, s72")
        k = 0
        if o == 'nm':
            for mi in range(8):
                for p in range(2):
                    c0, c1 = g.acc(mi, 2 * p), g.acc(mi, 2 * p + 1)
                    t = T + 4 * (k % 2)
                    k += 1
                    a(f"v_cvt_pk_bf16_f32 v{t}, v{c0}, v{c0+1}")
                    a(f"v_cvt_pk_bf16_f32 v{t+1}, v{c0+2}, v{c0+3}")
                    a(f"v_cvt_pk_bf16_f32 v{t+2}, v{c1}, v{c1+1}")
                    a(f"v_cvt_pk_bf16_f32 v{t+3}, v{c1+2}, v{c1+3}")
                    off = (mi >> 1) * 32 * 4 * 2048 + p * 2048 + (mi & 1) * 1024
                    a(f"s_add_u32 s74, s73, {off}")
                    a(f"buffer_store_dwordx4 v[{t}:{t+3}], v4, s[8:11], s74 offen{SC}")
        else:
            for q in range(4):
                for ni in range(4):
                    c0, c1 = g.acc(2 * q, ni), g.acc(2 * q + 1, ni)
                    t = T + 4 * (k % 2)
                    k += 1
                    a(f"v_cvt_pk_bf16_f32 v{t}, v{c0}, v{c0+1}")
                    a(f"v_cvt_pk_bf16_f32 v{t+1}, v{c0+2}, v{c0+3}")
                    a(f"v_cvt_pk_bf16_f32 v{t+2}, v{c1}, v{c1+1}")
                    a(f"v_cvt_pk_bf16_f32 v{t+3}, v{c1+2}, v{c1+3}")
                    off = q * 32 * 4 * 2048 + (ni >> 1) * 2048 + (ni & 1) * 1024
                    a(f"s_add_u32 s74, s73, {off}")
                    a(f"buffer_store_dwordx4 v[{t}:{t+3}], v4, s[8:11], s74 offen{SC}")

    if fused:
        return gemm_core(a, "qkv", 16, 8, 1, 16, WS['XN'], 16384, lambda q: (WS['WQKV'], 4 * q), 16384,
                         orient, epi, lead_barrier=True)
    return gemm(a, "qkv_kernel", 768, 16, 8, 1, 16, WS['XN'], 16384,
                lambda q: (WS['WQKV'], 4 * q), 16384, tile_of_wg, orient, epi)


def resid_epilogue(src_name, src_ws_off, dst_name, dst_ws_off):
    def epi(a, g, o):
        T = g.vtop
        if src_name == 'ws':
            ssrd = 8
        else:
            load_srd(a, 12, src_name, None)
            ssrd = 12
        if dst_name == 'ws':
            dsrd = 8
        else:
            load_srd(a, 16, dst_name, None)
            dsrd = 16
        a("v_lshlrev_b32 v5, 10, v2")
        a("v_lshl_add_u32 v5, v3, 3, v5")
        a(f"s_mul_i32 s60, s23, {g.MTw}")
        a("s_add_u32 s60, s60, s21")
        a("s_lshl_b32 s60, s60, 14")
        a(f"s_mul_i32 s61, s24, {g.NTw}")
        a("s_add_u32 s61, s61, s22")
        a("s_lshl_b32 s61, s61, 5")
        a("s_add_u32 s60, s60, s61")
        for mi in range(g.MTw):
            for ni in range(g.NTw):
                c = g.acc(mi, ni)
                a(f"s_add_u32 s61, s60, {mi*16384 + ni*32 + src_ws_off}")
                a(f"buffer_load_dwordx2 v[{T}:{T+1}], v5, s[{ssrd}:{ssrd+3}], s61 offen")
                a("s_waitcnt vmcnt(0)")
                a(f"v_lshlrev_b32 v{T+2}, 16, v{T}")
                a(f"v_and_b32 v{T+3}, 0xffff0000, v{T}")
                a(f"v_add_f32 v{c}, v{c}, v{T+2}")
                a(f"v_add_f32 v{c+1}, v{c+1}, v{T+3}")
                a(f"v_lshlrev_b32 v{T+2}, 16, v{T+1}")
                a(f"v_and_b32 v{T+3}, 0xffff0000, v{T+1}")
                a(f"v_add_f32 v{c+2}, v{c+2}, v{T+2}")
                a(f"v_add_f32 v{c+3}, v{c+3}, v{T+3}")
                a(f"v_cvt_pk_bf16_f32 v{c}, v{c}, v{c+1}")
                a(f"v_cvt_pk_bf16_f32 v{c+1}, v{c+2}, v{c+3}")
                a(f"s_add_u32 s61, s60, {mi*16384 + ni*32 + dst_ws_off}")
                a(f"buffer_store_dwordx2 v[{c}:{c+1}], v5, s[{dsrd}:{dsrd+3}], s61 offen")
    return epi


def k_wo(a):
    def tile_of_wg(a):
        a("s_and_b32 s22, s2, 7")
        a("s_lshl_b32 s22, s22, 2")
        a("s_lshr_b32 s21, s2, 3")
        a("s_lshl_b32 s21, s21, 2")
    return gemm(a, "wo_kernel", 256, 4, 4, 4, 32, WS['OF'], 128 * 1024,
                lambda q: (WS['WO'], 4 * q), 128 * 1024, tile_of_wg, 'nm',
                resid_epilogue('x', 0, 'ws', WS['H']))


def k_down(a):
    def tile_of_wg(a):
        a("s_and_b32 s22, s2, 7")
        a("s_lshl_b32 s22, s22, 2")
        a("s_lshr_b32 s21, s2, 3")
        a("s_lshl_b32 s21, s21, 2")
    return gemm(a, "down_kernel", 256, 4, 4, 4, 11, WS['ACT'], 44 * 1024,
                lambda q: (WS['WD'], 4 * q), 44 * 1024, tile_of_wg, 'nm',
                resid_epilogue('ws', WS['H'], 'out', 0))


def k_ffn1(a):
    def tile_of_wg(a):
        a("s_mul_i32 s21, s2, 5958")
        a("s_lshr_b32 s21, s21, 16")
        a("s_mul_i32 s60, s21, 11")
        a("s_sub_u32 s22, s2, s60")
        a("s_lshl_b32 s22, s22, 3")
        a("s_lshl_b32 s21, s21, 2")

    def bmap(q):
        return (WS['WU'] if (q & 1) else WS['WG'], (q >> 1) * 4)

    def epi(a, g, o):
        T = g.vtop
        C1 = 2.0 * (2.0 / 3.141592653589793) ** 0.5 * 1.4426950408889634
        a(f"s_mov_b32 s62, {f32(-C1)}")
        a(f"s_mov_b32 s63, {f32(-C1*0.044715)}")
        for mi in range(2):
            for ni in range(4):
                cg, cu = g.acc(mi, ni), g.acc(mi, ni + 4)
                for i in range(4):
                    x = cg + i
                    a(f"v_mul_f32 v{T}, v{x}, v{x}")
                    a(f"v_mov_b32 v{T+1}, s62")
                    a(f"v_fmac_f32 v{T+1}, s63, v{T}")
                    a(f"v_mul_f32 v{T+1}, v{T+1}, v{x}")
                    a(f"v_exp_f32 v{T+1}, v{T+1}")
                    a("s_nop 0")
                    a(f"v_add_f32 v{T+1}, 1.0, v{T+1}")
                    a(f"v_rcp_f32 v{T+1}, v{T+1}")
                    a("s_nop 0")
                    a(f"v_mul_f32 v{x}, v{x}, v{T+1}")
                    a(f"v_mul_f32 v{x}, v{x}, v{cu+i}")
        a("s_lshl_b32 s60, s23, 1")
        a("s_add_u32 s60, s60, s21")
        a(f"s_mul_i32 s60, s60, 44")
        a("s_lshl_b32 s61, s24, 2")
        a("s_add_u32 s61, s61, s22")
        a("s_lshr_b32 s61, s61, 1")
        a("s_add_u32 s60, s60, s61")
        a("s_lshl_b32 s60, s60, 10")
        a(f"s_add_u32 s60, s60, {WS['ACT']}")
        k = 0
        for mi in range(2):
            for p in range(2):
                c0, c1 = g.acc(mi, 2 * p), g.acc(mi, 2 * p + 1)
                t = T + 4 * (k % 2)
                k += 1
                a(f"v_cvt_pk_bf16_f32 v{t}, v{c0}, v{c0+1}")
                a(f"v_cvt_pk_bf16_f32 v{t+1}, v{c0+2}, v{c0+3}")
                a(f"v_cvt_pk_bf16_f32 v{t+2}, v{c1}, v{c1+1}")
                a(f"v_cvt_pk_bf16_f32 v{t+3}, v{c1+2}, v{c1+3}")
                a(f"s_add_u32 s61, s60, {mi*44*1024 + p*1024}")
                a(f"buffer_store_dwordx4 v[{t}:{t+3}], v4, s[8:11], s61 offen")

    return gemm(a, "ffn1_kernel", 352, 4, 16, 2, 8, WS['HN'], 16384, bmap, 16384, tile_of_wg, 'nm', epi)


def softmax_tiles(a, S, ntiles, tmp):
    m, t, c = tmp, tmp + 1, tmp + 2
    regs = [b + i for b in S for i in range(4)]
    a(f"v_max_f32 v{m}, v{regs[0]}, v{regs[1]}")
    i = 2
    while i < len(regs):
        a(f"v_max3_f32 v{m}, v{m}, v{regs[i]}, v{regs[i+1]}")
        i += 2
    xred_g(a, m, t, "v_max_f32")
    a(f"v_mul_f32 v{m}, {f32(-SCALE_LOG2E)}, v{m}")
    a(f"v_mov_b32 v{c}, {f32(SCALE_LOG2E)}")
    for r in regs:
        a(f"v_fma_f32 v{r}, v{r}, v{c}, v{m}")
    for r in regs:
        a(f"v_exp_f32 v{r}, v{r}")
    a("s_nop 0")
    a(f"v_add_f32 v{m}, v{regs[0]}, v{regs[1]}")
    for r in regs[2:]:
        a(f"v_add_f32 v{m}, v{m}, v{r}")
    xred_g(a, m, t, "v_add_f32")
    a(f"v_rcp_f32 v{m}, v{m}")
    a("s_nop 0")
    for r in regs:
        a(f"v_mul_f32 v{r}, v{r}, v{m}")


def k_attn(a):
    name = "attn_kernel"
    kernel_header(a, name)
    done = a.label("attn_done")
    a("s_cmp_ge_u32 s2, 512")
    a(f"s_cbranch_scc1 {done}")
    wave_id(a, 3, 1)
    a("s_lshl_b32 s4, s2, 2")
    a("s_add_u32 s3, s3, s4")
    lane_setup(a)
    load_srd(a, 8, "ws", None)
    Q, K, V, KM, VM = 16, 48, 80, 112, 128
    S = 144
    P = 168
    O = 180
    TMP = 244
    a("s_lshl_b32 s4, s3, 13")
    for nm, base in (("QF", Q), ("KF", K), ("VF", V)):
        a(f"s_add_u32 s5, s4, {WS[nm]}")
        for i in range(8):
            if i == 4:
                a("s_add_u32 s5, s5, 4096")
            a(f"buffer_load_dwordx4 v[{base+4*i}:{base+4*i+3}], v4, s[8:11], s5 offen offset:{(i%4)*1024}")
    a("s_lshl_b32 s4, s3, 12")
    a(f"s_add_u32 s5, s4, {WS['KMF']}")
    for i in range(4):
        a(f"buffer_load_dwordx4 v[{KM+4*i}:{KM+4*i+3}], v4, s[8:11], s5 offen offset:{i*1024}")
    a(f"s_add_u32 s5, s4, {WS['VMF']}")
    a("v_lshlrev_b32 v5, 3, v1")
    for i in range(8):
        a(f"buffer_load_dwordx2 v[{VM+2*i}:{VM+2*i+1}], v5, s[8:11], s5 offen offset:{i*512}")
    for i in range(24):
        a(f"v_mov_b32 v{S+i}, 0")
    a("s_waitcnt vmcnt(0)")
    for qt in range(2):
        for kt in range(3):
            if qt == 0 and kt == 2:
                continue
            s = S + (qt * 3 + kt) * 4
            for w in range(4):
                ka = KM + 4 * w if kt == 0 else K + (w * 2 + kt - 1) * 4
                qb = Q + (w * 2 + qt) * 4
                a(f"v_mfma_f32_16x16x32_bf16 {vr(s,4)}, {vr(ka,4)}, {vr(qb,4)}, {vr(s,4)}")
    a.nop(10)
    a("v_mov_b32 v6, 0xff800000")
    a("v_lshlrev_b32 v7, 2, v3")
    a("v_cmp_gt_u32 vcc, 2, v3")
    a("s_nop 1")
    for qt in range(2):
        for i in range(4):
            r = S + (qt * 3) * 4 + i
            a(f"v_cndmask_b32 v{r}, v6, v{r}, vcc")
    for i in range(4):
        a(f"v_add_u32 v8, {i}, v7")
        a("v_cmp_ge_u32 vcc, v2, v8")
        a("s_nop 1")
        r = S + (0 * 3 + 1) * 4 + i
        a(f"v_cndmask_b32 v{r}, v6, v{r}, vcc")
        r = S + (1 * 3 + 2) * 4 + i
        a(f"v_cndmask_b32 v{r}, v6, v{r}, vcc")
    softmax_tiles(a, [S, S + 4], 2, TMP)
    softmax_tiles(a, [S + 12, S + 16, S + 20], 3, TMP)
    for qt in range(2):
        s0, s1, s2 = S + qt * 12, S + qt * 12 + 4, S + qt * 12 + 8
        p = P + qt * 6
        a(f"v_cvt_pk_bf16_f32 v{p}, v{s1}, v{s1+1}")
        a(f"v_cvt_pk_bf16_f32 v{p+1}, v{s1+2}, v{s1+3}")
        if qt == 0:
            a(f"v_mov_b32 v{p+2}, 0")
            a(f"v_mov_b32 v{p+3}, 0")
        else:
            a(f"v_cvt_pk_bf16_f32 v{p+2}, v{s2}, v{s2+1}")
            a(f"v_cvt_pk_bf16_f32 v{p+3}, v{s2+2}, v{s2+3}")
        a(f"v_cvt_pk_bf16_f32 v{p+4}, v{s0}, v{s0+1}")
        a(f"v_cvt_pk_bf16_f32 v{p+5}, v{s0+2}, v{s0+3}")
    for i in range(64):
        a(f"v_mov_b32 v{O+i}, 0")
    a("s_nop 1")
    for qt in range(2):
        p = P + qt * 6
        for et in range(8):
            o = O + (qt * 8 + et) * 4
            a(f"v_mfma_f32_16x16x32_bf16 {vr(o,4)}, {vr(V+4*et,4)}, {vr(p,4)}, {vr(o,4)}")
    for qt in range(2):
        p = P + qt * 6
        for et in range(8):
            o = O + (qt * 8 + et) * 4
            a(f"v_mfma_f32_16x16x16_bf16 {vr(o,4)}, {vr(VM+2*et,2)}, {vr(p+4,2)}, {vr(o,4)}")
    a.nop(10)
    a("s_lshr_b32 s4, s3, 5")
    a("s_lshl_b32 s4, s4, 18")
    a("s_and_b32 s5, s3, 31")
    a("s_lshl_b32 s5, s5, 12")
    a("s_add_u32 s4, s4, s5")
    a(f"s_add_u32 s4, s4, {WS['OF']}")
    for qt in range(2):
        for w in range(4):
            o0, o1 = O + (qt * 8 + 2 * w) * 4, O + (qt * 8 + 2 * w + 1) * 4
            a(f"v_cvt_pk_bf16_f32 v{o0}, v{o0}, v{o0+1}")
            a(f"v_cvt_pk_bf16_f32 v{o0+1}, v{o0+2}, v{o0+3}")
            a(f"v_cvt_pk_bf16_f32 v{o0+2}, v{o1}, v{o1+1}")
            a(f"v_cvt_pk_bf16_f32 v{o0+3}, v{o1+2}, v{o1+3}")
            a(f"buffer_store_dwordx4 v[{o0}:{o0+3}], v4, s[8:11], s4 offen offset:{w*1024}")
        if qt == 0:
            a(f"s_add_u32 s4, s4, {128*1024}")
    a(f"{done}:")
    a("s_endpgm")
    return name, 248, 512, 0


L_WO, L_MEMS, L_SX, L_OX = 32768, 0, 16384, 28672
SPIN_MAX = 1 << 22


def k_chain(a):
    name = "chain_kernel"
    kernel_header(a, name)
    done = a.label("chain_done")
    a("s_cmp_ge_u32 s2, 256")
    a(f"s_cbranch_scc1 {done}")
    if os.environ.get("CH_T"):
        a("s_memrealtime s[80:81]")
        a("s_memtime s[82:83]")
    wave_id(a, 20, 1)
    lane_setup(a)
    load_srd(a, 8, "ws", None)
    load_srd(a, 12, "dbg", None)
    load_srd(a, 16, "mem0", None)
    a("s_getreg_b32 s21, hwreg(HW_REG_XCC_ID)")
    a("s_and_b32 s21, s21, 15")
    lbar = a.label("role_bar")
    a("s_cmp_lg_u32 s20, 0")
    a(f"s_cbranch_scc1 {lbar}")
    a("v_mov_b32 v6, 1")
    a("v_mov_b32 v7, 0")
    a("v_mov_b32 v8, 4")
    a("s_mov_b64 s[22:23], exec")
    a("s_mov_b64 exec, 1")
    lnx, lgot, lA2 = a.label("notx0"), a.label("gotrole"), a.label("takeA")
    a("s_cmp_lg_u32 s21, 0")
    a(f"s_cbranch_scc1 {lnx}")
    a("buffer_atomic_add v6, v7, s[12:15], 0 offen sc0")
    a("s_waitcnt vmcnt(0)")
    a("v_readfirstlane_b32 s24, v6")
    a("s_cmp_lt_u32 s24, 32")
    a(f"s_cbranch_scc1 {lgot}")
    a("v_mov_b32 v6, 1")
    a("buffer_atomic_add v6, v8, s[12:15], 0 offen sc0")
    a("s_waitcnt vmcnt(0)")
    a("s_mov_b32 s24, -1")
    a(f"s_branch {lgot}")
    a(f"{lnx}:")
    a("buffer_atomic_add v6, v8, s[12:15], 0 offen sc0")
    a("s_waitcnt vmcnt(0)")
    a("v_readfirstlane_b32 s24, v6")
    a("s_cmp_ge_u32 s24, 224")
    a(f"s_cbranch_scc1 {lA2}")
    a("s_mov_b32 s24, -1")
    a(f"s_branch {lgot}")
    a(f"{lA2}:")
    a("v_mov_b32 v6, 1")
    a("buffer_atomic_add v6, v7, s[12:15], 0 offen sc0")
    a("s_waitcnt vmcnt(0)")
    a("v_readfirstlane_b32 s24, v6")
    a(f"{lgot}:")
    a("v_mov_b32 v6, s24")
    a(f"v_mov_b32 v7, {L_OX}")
    a("ds_write_b32 v7, v6")
    a("s_waitcnt lgkmcnt(0)")
    a("s_mov_b64 exec, s[22:23]")
    a(f"{lbar}:")
    a("s_barrier")
    a(f"v_mov_b32 v7, {L_OX}")
    a("ds_read_b32 v6, v7")
    a("s_waitcnt lgkmcnt(0)")
    a("v_readfirstlane_b32 s24, v6")
    a("s_cmp_ge_u32 s24, 32")
    a(f"s_cbranch_scc1 {done}")
    a("s_barrier")
    lsk = a.label("nopub")
    a("s_cmp_lg_u32 s20, 0")
    a(f"s_cbranch_scc1 {lsk}")
    a("s_cmp_eq_u32 s21, 0")
    a("s_cselect_b32 s25, 1, 2")
    a("v_mov_b32 v6, s25")
    a("s_lshl_b32 s25, s24, 2")
    a("s_add_u32 s25, s25, 64")
    a("v_mov_b32 v7, s25")
    a("s_mov_b64 s[22:23], exec")
    a("s_mov_b64 exec, 1")
    a("buffer_store_dword v6, v7, s[12:15], 0 offen sc1")
    a("s_mov_b64 exec, s[22:23]")
    a(f"{lsk}:")
    for mat in range(3):
        for t in range(2):
            a("s_lshl_b32 s25, s24, 3")
            a("s_lshl_b32 s26, s20, 1")
            a("s_add_u32 s25, s25, s26")
            a(f"s_add_u32 s25, s25, {mat*256+t}")
            a("s_lshl_b32 s25, s25, 14")
            a(f"s_add_u32 s25, s25, {WS['WQKV']}")
            for kb in range(16):
                idx = [256, 384, 128][mat] + (t * 16 + kb) * 4
                if kb % 4 == 0 and kb:
                    a("s_add_u32 s25, s25, 4096")
                a(f"buffer_load_dwordx4 {reg(idx,4)}, v4, s[8:11], s25 offen offset:{(kb%4)*1024}")
    for i in range(8):
        a("s_lshl_b32 s25, s20, 3")
        a(f"s_add_u32 s25, s25, {i}")
        a("s_lshl_b32 s26, s25, 12")
        a(f"s_add_u32 m0, s26, {L_WO}")
        a("s_lshl_b32 s25, s25, 7")
        a("s_lshl_b32 s26, s24, 2")
        a("s_add_u32 s25, s25, s26")
        a("s_lshl_b32 s25, s25, 10")
        a(f"s_add_u32 s25, s25, {WS['WO']}")
        for kb in range(4):
            a(f"buffer_load_dwordx4 v4, s[8:11], s25 offen offset:{kb*1024} lds")
    a("v_mov_b32 v8, 0\nv_mov_b32 v9, 0\nv_mov_b32 v10, 0\nv_mov_b32 v11, 0")
    a("v_lshlrev_b32 v6, 4, v0")
    for i in range(4):
        a(f"ds_write_b128 v6, v[8:11] offset:{L_MEMS + i*4096}")
    a("s_mov_b32 s27, 0")
    lp = a.label("modepoll")
    a("v_lshlrev_b32 v6, 2, v1")
    a("v_and_b32 v6, 127, v6")
    a(f"{lp}:")
    a("buffer_load_dword v7, v6, s[12:15], 0 offen offset:64 sc1")
    a("s_waitcnt vmcnt(0)")
    a("s_add_u32 s27, s27, 1")
    a(f"s_cmp_gt_u32 s27, {SPIN_MAX}")
    a(f"s_cbranch_scc1 {done}")
    a("v_cmp_eq_u32 vcc, 0, v7")
    a(f"s_cbranch_vccnz {lp}")
    a("v_cmp_eq_u32 vcc, 2, v7")
    a("s_cmp_lg_u64 vcc, 0")
    a("s_cselect_b32 s28, 1, 0")
    a("v_and_b32 v6, 31, v1")
    a("v_lshrrev_b32 v7, 1, v6")
    a("v_lshlrev_b32 v5, 10, v7")
    a("v_and_b32 v7, 1, v6")
    a("v_lshl_add_u32 v5, v7, 9, v5")
    a("v_lshrrev_b32 v7, 5, v1")
    a("s_lshl_b32 s25, s20, 1")
    a("v_add_u32 v7, s25, v7")
    a("v_lshl_add_u32 v5, v7, 4, v5")
    a(f"v_add_u32 v5, {L_MEMS}, v5")
    a("v_lshlrev_b32 v6, 5, v1")
    a("s_lshl_b32 s25, s20, 11")
    a("v_add_u32 v6, s25, v6")
    a("v_lshlrev_b32 v7, 5, v2")
    a("v_lshl_add_u32 v7, v3, 3, v7")
    a("s_lshl_b32 s25, s24, 8")
    a("v_add_u32 v7, s25, v7")
    RD, MO = 124, 125
    a(f"v_lshrrev_b32 v{RD}, 3, v1")
    a(f"v_lshlrev_b32 v{RD}, 10, v{RD}")
    a(f"v_and_b32 v{MO}, 7, v1")
    a(f"v_lshl_add_u32 v{RD}, v{MO}, 3, v{RD}")
    a("s_lshl_b32 s25, s24, 13")
    a("s_lshl_b32 s26, s20, 6")
    a("s_add_u32 s25, s25, s26")
    a(f"v_add_u32 v{RD}, s25, v{RD}")
    a(f"v_lshrrev_b32 v8, 2, v{MO}")
    a("s_lshl_b32 s25, s20, 1")
    a("v_add_u32 v8, s25, v8")
    a("v_lshlrev_b32 v8, 10, v8")
    a(f"v_and_b32 v{MO}, 3, v{MO}")
    a(f"v_lshl_add_u32 v{MO}, v{MO}, 3, v8")
    a("s_lshl_b32 s25, s24, 5")
    a(f"v_add_u32 v{MO}, s25, v{MO}")
    a("s_lshl_b32 s30, s24, 2")
    a("s_add_u32 s30, s30, s20")
    a("s_lshl_b32 s31, s30, 10")
    a("s_lshl_b32 s30, s30, 11")
    MEMF, QA, KA, VA = 8, 72, 80, 88
    KX, VX, S = 96, 104, 112
    WOA, TMP = 126, 127
    a("s_mov_b32 s29, 0")
    a("v_cmp_gt_u32 vcc, 8, v2")
    a("v_mov_b32 v8, 0x10000000")
    a("s_nop 1")
    a("v_cndmask_b32 v7, v8, v7, vcc")
    a("v_cmp_gt_u32 s[44:45], 2, v3")
    a("v_cmp_gt_u32 s[46:47], 8, v1")
    a("s_lshl_b32 s25, s20, 15")
    a(f"s_add_u32 s25, s25, {L_WO}")
    a(f"v_add_u32 v{WOA}, s25, v4")
    for k in range(3):
        a(f"s_add_u32 s25, s20, {k+1}")
        a("s_and_b32 s25, s25, 3")
        a(f"s_mul_i32 s{40+k}, s25, 3072")
    a("s_mul_i32 s43, s20, 3072")
    a("s_lshl_b32 s48, s20, 10")
    a("v_and_b32 v8, 7, v2")
    a("v_lshl_add_u32 v8, v3, 4, v8")
    a("v_lshlrev_b32 v8, 4, v8")
    a("v_lshrrev_b32 v9, 3, v2")
    a("v_lshl_add_u32 v3, v9, 3, v8")
    a("v_add_u32 v9, 1, v9")
    a("v_lshl_add_u32 v2, v9, 10, v8")

    def load_kv():
        a("s_lshl_b32 s25, s29, 18")
        a("s_add_u32 s25, s25, s30")
        a(f"s_add_u32 s26, s25, {WS['KF']}")
        a(f"buffer_load_dwordx4 v[{KX}:{KX+3}], v4, s[8:11], s26 offen")
        a(f"buffer_load_dwordx4 v[{KX+4}:{KX+7}], v4, s[8:11], s26 offen offset:1024")
        a(f"s_add_u32 s26, s25, {WS['VF']}")
        a(f"buffer_load_dwordx4 v[{VX}:{VX+3}], v4, s[8:11], s26 offen")
        a(f"buffer_load_dwordx4 v[{VX+4}:{VX+7}], v4, s[8:11], s26 offen offset:1024")
    load_kv()
    a("buffer_load_dwordx4 v[8:11], v6, s[16:19], 0 offen")
    a("buffer_load_dwordx4 v[12:15], v6, s[16:19], 0 offen offset:16")
    a("s_waitcnt vmcnt(0) lgkmcnt(0)")
    a("s_barrier")
    PROF = os.environ.get("CH_PROF")

    def stamp(i):
        if PROF:
            a("s_memtime s[50:51]")
            a("s_waitcnt lgkmcnt(0)")
            a(f"s_mov_b32 s{60+i}, s50")

    def mfma(d, x, y, c):
        a(f"v_mfma_f32_16x16x32_bf16 {d}, {x}, {y}, {c}")

    def step_loop(sc):
        lstage = a.label("stage")
        loop = a.label("step")
        a(f"s_branch {lstage}")
        a(f"{loop}:")
        stamp(0)
        lp = a.label("mempoll")
        a(f"{lp}:")
        a("buffer_load_dwordx4 v[8:11], v6, s[8:11], s32 offen sc1")
        a("buffer_load_dwordx4 v[12:15], v6, s[8:11], s32 offen offset:16 sc1")
        a("s_add_u32 s27, s27, 1")
        a(f"s_cmp_gt_u32 s27, {SPIN_MAX}")
        a(f"s_cbranch_scc1 {done}")
        a("s_waitcnt vmcnt(0)")
        a("v_max3_u32 v16, v8, v9, v10")
        a("v_max3_u32 v17, v11, v12, v13")
        a("v_max3_u32 v16, v16, v14, v15")
        a("v_max_u32 v16, v16, v17")
        a("v_cmp_eq_u32 vcc, -1, v16")
        a(f"s_cbranch_vccnz {lp}")
        a(f"{lstage}:")
        stamp(1)
        a("ds_write_b128 v5, v[8:11]")
        a("ds_write_b128 v5, v[12:15] offset:256")
        a("s_waitcnt lgkmcnt(0)")
        a("s_barrier")
        for kb in range(16):
            a(f"ds_read_b128 v[{MEMF+4*kb}:{MEMF+4*kb+3}], v4 offset:{L_MEMS+kb*1024}")
        stamp(2)
        for kb in range(16):
            a(f"s_waitcnt lgkmcnt({15-kb})")
            m = vr(MEMF + 4 * kb, 4)
            for t in range(2):
                mfma(vr(QA+4*t,4), reg(256+(t*16+kb)*4,4), m, vr(QA+4*t,4) if kb else "0")
                mfma(vr(KA+4*t,4), reg(384+(t*16+kb)*4,4), m, vr(KA+4*t,4) if kb else "0")
            if kb == 2:
                a("s_and_b32 s25, s29, 1")
                a("s_lshl_b32 s25, s25, 18")
                a(f"s_add_u32 s33, s25, {WS['PART']}")
                a("s_lshl_b32 s25, s20, 16")
                a("s_add_u32 s34, s33, s25")
                a("s_add_u32 s26, s29, 1")
                a("s_mul_i32 s25, s26, 21846")
                a("s_lshr_b32 s25, s25, 16")
                a("s_mul_i32 s25, s25, 3")
                a("s_sub_u32 s25, s26, s25")
                a("s_lshl_b32 s35, s25, 13")
                a(f"s_add_u32 s35, s35, {WS['MEMX']}")
                a("s_add_u32 s25, s25, 2")
                a("s_cmp_ge_u32 s25, 3")
                a("s_cselect_b32 s26, 3, 0")
                a("s_sub_u32 s25, s25, s26")
                a("s_lshl_b32 s36, s25, 13")
                a(f"s_add_u32 s36, s36, {WS['MEMX']}")
            if kb == 6:
                for i in range(8):
                    a(f"s_add_u32 s{52+i}, s34, {i*8192}")
            if kb == 4:
                a("s_lshl_b32 s25, s29, 17")
                a("s_add_u32 s25, s25, s31")
                a(f"s_add_u32 s37, s25, {WS['KMF']}")
                a(f"s_add_u32 s38, s25, {WS['VMF']}")
                a(f"v_add_u32 v{TMP}, s43, v4")

        def vm(kb):
            m = vr(MEMF + 4 * kb, 4)
            for t in range(2):
                mfma(vr(VA+4*t,4), m, reg(128+(t*16+kb)*4,4), vr(VA+4*t,4) if kb else "0")
        vm(0)
        vm(1)
        vm(2)
        a("s_nop 1")
        stamp(3)
        QB, KB = QA, KA
        for (d, s_) in ((QB, QA), (KB, KA)):
            for i in range(4):
                a(f"v_cvt_pk_bf16_f32 v{d+i}, v{s_+2*i}, v{s_+2*i+1}")
        a("s_nop 1")
        mfma(vr(S,4), vr(KB,4), vr(QB,4), "0")
        mfma(vr(S+4,4), vr(KX,4), vr(QB,4), "0")
        mfma(vr(S+8,4), vr(KX+4,4), vr(QB,4), "0")
        a(f"buffer_store_dwordx4 v[{KB}:{KB+3}], v4, s[8:11], s37 offen")
        vm(3)
        vm(4)
        vm(5)
        vm(6)
        for t in range(3):
            a(f"ds_write_b128 v{TMP}, v[{S+4*t}:{S+4*t+3}] offset:{L_SX+t*1024}")
        vm(7)
        a("s_waitcnt lgkmcnt(0)")
        a("s_barrier")
        stamp(4)
        X = 8
        for k in range(4):
            a(f"ds_read_b128 v[{X+6*k}:{X+6*k+3}], v2 offset:{L_SX+k*3072}")
            a(f"ds_read_b64 v[{X+6*k+4}:{X+6*k+5}], v3 offset:{L_SX+k*3072}")
        for kb in range(8, 16):
            vm(kb)
        lend = a.label("last")
        a("s_cmp_eq_u32 s29, 63")
        a(f"s_cbranch_scc1 {lend}")
        pend = []
        for (i, kbs) in ((3, range(4)), (2, range(4)), (1, (2, 3))):
            for kb in kbs:
                pend.append(f"ds_read_b128 v[{8+16*i+4*kb}:{11+16*i+4*kb}], v{WOA} offset:{i*4096+kb*1024}")
        pend2 = []
        for (i, kbs) in ((1, (0, 1)), (0, range(4))):
            for kb in kbs:
                pend2.append(f"ds_read_b128 v[{8+16*i+4*kb}:{11+16*i+4*kb}], v{WOA} offset:{i*4096+kb*1024}")
        cnt = [0]

        def v(sx):
            a(sx)
            cnt[0] += 1
            if cnt[0] % 3 == 0 and pend:
                a(pend.pop(0))
        T = S
        a("s_waitcnt lgkmcnt(0)")
        for i in range(0, 6, 2):
            a(f"v_pk_add_f32 v[{X+i}:{X+i+1}], v[{X+i}:{X+i+1}], v[{X+6+i}:{X+7+i}]")
            a(f"v_pk_add_f32 v[{X+12+i}:{X+13+i}], v[{X+12+i}:{X+13+i}], v[{X+18+i}:{X+19+i}]")
        for i in range(0, 6, 2):
            a(f"v_pk_add_f32 v[{T+i}:{T+i+1}], v[{X+i}:{X+i+1}], v[{X+12+i}:{X+13+i}]")
        pend += pend2
        v("v_mov_b32 v72, 0xff800000")
        v(f"v_cndmask_b32 v{T+4}, v72, v{T+4}, s[44:45]")
        v(f"v_cndmask_b32 v{T+5}, v72, v{T+5}, s[44:45]")
        v(f"v_max3_f32 v72, v{T}, v{T+1}, v{T+2}")
        v(f"v_max3_f32 v73, v{T+3}, v{T+4}, v{T+5}")
        v("v_max_f32 v72, v72, v73")
        v(f"v_mov_b32 v74, {f32(SCALE_LOG2E)}")
        v(f"v_mov_b32 v75, {f32(SCALE_LOG2E)}")
        v("v_max_f32_dpp v72, v72, v72 row_ror:8 row_mask:0xf bank_mask:0xf")
        for sw in ("v_permlane16_swap_b32", "v_permlane32_swap_b32"):
            v("v_mov_b32 v73, v72")
            v("v_cvt_pk_bf16_f32 v88, v88, v89" if sw.startswith("v_permlane16") else "v_cvt_pk_bf16_f32 v92, v92, v93")
            v("v_cvt_pk_bf16_f32 v89, v90, v91" if sw.startswith("v_permlane16") else "v_cvt_pk_bf16_f32 v93, v94, v95")
            v(f"{sw} v72, v73")
            v("v_max_f32 v72, v72, v73")
        v(f"v_mul_f32 v72, {f32(-SCALE_LOG2E)}, v72")
        v("v_mov_b32 v73, v72")
        for i in range(0, 6, 2):
            v(f"v_pk_fma_f32 v[{T+i}:{T+i+1}], v[{T+i}:{T+i+1}], v[74:75], v[72:73]")
        for i in range(6):
            v(f"v_exp_f32 v{T+i}, v{T+i}")
        v("v_mov_b32 v90, 0")
        v("v_mov_b32 v91, 0")
        v("v_mov_b32 v94, 0")
        v("v_mov_b32 v95, 0")
        PT, PM = 76, 80
        v(f"v_cvt_pk_bf16_f32 v{PT}, v{T}, v{T+1}")
        v(f"v_cvt_pk_bf16_f32 v{PT+1}, v{T+2}, v{T+3}")
        v(f"v_cvt_pk_bf16_f32 v{PM}, v{T+4}, v{T+5}")
        v(f"v_pk_add_f32 v[72:73], v[{T}:{T+1}], v[{T+2}:{T+3}]")
        v(f"v_mov_b32 v{PM+2}, 0")
        v(f"v_mov_b32_dpp v{PT+2}, v{PT} row_ror:8 row_mask:0xf bank_mask:0xf")
        v(f"v_mov_b32_dpp v{PT+3}, v{PT+1} row_ror:8 row_mask:0xf bank_mask:0xf")
        v(f"v_mov_b32_dpp v{PM+1}, v{PM} row_ror:8 row_mask:0xf bank_mask:0xf")
        v(f"v_mov_b32 v{PM+3}, 0")
        v(f"v_pk_add_f32 v[72:73], v[72:73], v[{T+4}:{T+5}]")
        O = 112
        while pend:
            a(pend.pop(0))
        a("v_add_f32 v72, v72, v73")
        mfma(vr(O,4), vr(VX,4), vr(PT,4), "0")
        mfma(vr(O+4,4), vr(VX+4,4), vr(PT,4), "0")
        mfma(vr(O,4), vr(88,4), vr(PM,4), vr(O,4))
        mfma(vr(O+4,4), vr(92,4), vr(PM,4), vr(O+4,4))
        a("v_add_f32_dpp v72, v72, v72 row_ror:8 row_mask:0xf bank_mask:0xf")
        xred_g(a, 72, 73, "v_add_f32")
        a("v_rcp_f32 v72, v72")
        a("v_lshlrev_b32 v84, 3, v1")
        a(f"buffer_store_dwordx2 v[88:89], v84, s[8:11], s38 offen")
        a(f"buffer_store_dwordx2 v[92:93], v84, s[8:11], s38 offen offset:512")
        a("v_mov_b32 v73, v72")
        a("s_add_u32 s29, s29, 1")
        load_kv()
        for i in range(0, 8, 2):
            a(f"v_pk_mul_f32 v[{O+i}:{O+i+1}], v[{O+i}:{O+i+1}], v[72:73]")
        for i in range(4):
            a(f"v_cvt_pk_bf16_f32 v{O+i}, v{O+2*i}, v{O+2*i+1}")
        a("v_add_u32 v74, s48, v4")
        a(f"ds_write_b128 v74, v[{O}:{O+3}] offset:{L_OX}")
        a("s_waitcnt lgkmcnt(0)")
        a("s_barrier")
        stamp(5)
        OFR = 72
        for kb in range(4):
            a(f"ds_read_b128 v[{OFR+4*kb}:{OFR+4*kb+3}], v4 offset:{L_OX+kb*1024}")
        DS = [88, 92, 112, 116]

        def pack_store(i):
            d = DS[i % 4]
            a(f"v_cvt_pk_bf16_f32 v{d}, v{d}, v{d+1}")
            a(f"v_cvt_pk_bf16_f32 v{d+1}, v{d+2}, v{d+3}")
            a(f"v_min_u32 v{d}, 0xfffffffe, v{d}")
            a(f"v_min_u32 v{d+1}, 0xfffffffe, v{d+1}")
            a(f"buffer_store_dwordx2 v[{d}:{d+1}], v7, s[8:11], s{52+i} offen{sc}")
        for i in range(8):
            fb = 8 + 16 * (i % 4)
            d = DS[i % 4]
            if i == 0:
                a("s_waitcnt lgkmcnt(0)")
            elif i >= 4:
                a(f"s_waitcnt lgkmcnt({4*(7-i)})")
            for kb in range(4):
                mfma(vr(d,4), vr(fb+4*kb,4), vr(OFR+4*kb,4), vr(d,4) if kb else "0")
            if i < 4:
                for kb in range(4):
                    a(f"ds_read_b128 v[{fb+4*kb}:{fb+4*kb+3}], v{WOA} offset:{(i+4)*4096+kb*1024}")
            if i >= 2:
                pack_store(i - 2)
        pack_store(6)
        a("s_nop 3")
        pack_store(7)
        stamp(6)
        stamp(7)
        R = 8
        lp = a.label("partpoll")
        a(f"{lp}:")
        for j in range(4):
            a(f"buffer_load_dwordx2 v[{R+2*j}:{R+2*j+1}], v{RD}, s[8:11], s33 offen offset:{j*256} sc1")
        a("s_add_u32 s27, s27, 1")
        a(f"s_cmp_gt_u32 s27, {SPIN_MAX}")
        a(f"s_cbranch_scc1 {done}")
        a("s_waitcnt vmcnt(0)")
        a(f"v_max3_u32 v16, v{R}, v{R+1}, v{R+2}")
        a(f"v_max3_u32 v17, v{R+3}, v{R+4}, v{R+5}")
        a(f"v_max3_u32 v16, v16, v{R+6}, v{R+7}")
        a(f"v_max_u32 v16, v16, v17")
        a("v_cmp_eq_u32 vcc, -1, v16")
        a(f"s_cbranch_vccnz {lp}")
        stamp(8)
        for j in range(4):
            for hlf in range(2):
                src = R + 2 * j + hlf
                a(f"v_lshlrev_b32 v{20+4*j+2*hlf}, 16, v{src}")
                a(f"v_and_b32 v{21+4*j+2*hlf}, 0xffff0000, v{src}")
        for hlf in range(2):
            a(f"v_pk_add_f32 v[{20+2*hlf}:{21+2*hlf}], v[{20+2*hlf}:{21+2*hlf}], v[{24+2*hlf}:{25+2*hlf}]")
            a(f"v_pk_add_f32 v[{28+2*hlf}:{29+2*hlf}], v[{28+2*hlf}:{29+2*hlf}], v[{32+2*hlf}:{33+2*hlf}]")
        for hlf in range(2):
            a(f"v_pk_add_f32 v[{20+2*hlf}:{21+2*hlf}], v[{20+2*hlf}:{21+2*hlf}], v[{28+2*hlf}:{29+2*hlf}]")
        a("v_mov_b32 v28, -1\nv_mov_b32 v29, -1")
        A0 = 20
        for i in range(4):
            a(f"v_add_f32_dpp v{A0+i}, v{A0+i}, v{A0+i} row_ror:8 row_mask:0xf bank_mask:0xf")
        for sw in ("v_permlane16_swap_b32", "v_permlane32_swap_b32"):
            for i in range(4):
                a(f"v_mov_b32 v{24+i}, v{A0+i}")
            a("s_nop 0")
            for i in range(4):
                a(f"{sw} v{A0+i}, v{24+i}")
            a(f"v_pk_add_f32 v[20:21], v[20:21], v[24:25]")
            a(f"v_pk_add_f32 v[22:23], v[22:23], v[26:27]")
        a(f"v_cvt_pk_bf16_f32 v26, v{A0}, v{A0+1}")
        a(f"v_cvt_pk_bf16_f32 v27, v{A0+2}, v{A0+3}")
        a("v_min_u32 v26, 0xfffffffe, v26")
        a("v_min_u32 v27, 0xfffffffe, v27")
        a("s_mov_b64 exec, s[46:47]")
        a(f"buffer_store_dwordx2 v[26:27], v{MO}, s[8:11], s35 offen{sc}")
        a(f"buffer_store_dwordx2 v[28:29], v{MO}, s[8:11], s36 offen{sc}")
        a("s_mov_b64 exec, -1")
        for j in range(4):
            a(f"buffer_store_dwordx2 v[28:29], v{RD}, s[8:11], s33 offen offset:{j*256}{sc}")
        stamp(9)
        if PROF:
            lsk = a.label("noprof")
            a("s_cmp_lg_u32 s29, 21")
            a(f"s_cbranch_scc1 {lsk}")
            for i in range(10):
                a(f"v_mov_b32 v30, s{60+i}")
                a("s_lshl_b32 s25, s24, 2")
                a("s_add_u32 s25, s25, s20")
                a("s_lshl_b32 s25, s25, 6")
                a(f"s_add_u32 s25, s25, {120*MB + 4*i}")
                a("v_mov_b32 v31, 0")
                a("buffer_store_dword v30, v31, s[8:11], s25 offen")
            a(f"{lsk}:")
        a("s_mov_b32 s32, s35")
        a(f"s_branch {loop}")
        a(f"{lend}:")
        a.nop(8)
        a("v_cvt_pk_bf16_f32 v88, v88, v89")
        a("v_cvt_pk_bf16_f32 v89, v90, v91")
        a("v_cvt_pk_bf16_f32 v92, v92, v93")
        a("v_cvt_pk_bf16_f32 v93, v94, v95")
        a("v_lshlrev_b32 v84, 3, v1")
        a(f"buffer_store_dwordx2 v[88:89], v84, s[8:11], s38 offen")
        a(f"buffer_store_dwordx2 v[92:93], v84, s[8:11], s38 offen offset:512")
        if os.environ.get("CH_T"):
            a("s_memrealtime s[88:89]")
            a("s_memtime s[90:91]")
            a("s_waitcnt lgkmcnt(0)")
            for i in range(6):
                a(f"v_mov_b32 v30, s{80+2*i}")
                a("s_lshl_b32 s25, s24, 2")
                a("s_add_u32 s25, s25, s20")
                a("s_lshl_b32 s25, s25, 6")
                a(f"s_add_u32 s25, s25, {121*MB + 4*i}")
                a("v_mov_b32 v31, 0")
                a("buffer_store_dword v30, v31, s[8:11], s25 offen")
        a(f"s_branch {done}")

    if os.environ.get("CH_T"):
        a("s_memrealtime s[84:85]")
        a("s_memtime s[86:87]")
    lslow = a.label("slowloop")
    a("s_cmp_lg_u32 s28, 0")
    a(f"s_cbranch_scc1 {lslow}")
    step_loop("")
    a(f"{lslow}:")
    step_loop(" sc1")
    a(f"{done}:")
    a("s_endpgm")
    return name, 512, 256, 163840


def k_fused(a):
    import chain3
    name = "fused_kernel"
    kernel_header(a, name)
    done = a.label("fused_done")
    a("s_cmp_ge_u32 s2, 256")
    a(f"s_cbranch_scc1 {done}")
    wave_id(a, 20, 1)
    load_srd(a, 8, "ws", None)
    load_srd(a, 12, "dbg", None)
    load_srd(a, 16, "mem0", None)
    chain3.role_assign(a, done, chain3.L_DUMMY)
    lw = a.label("worker")
    a("s_cmp_ge_u32 s24, 32")
    a(f"s_cbranch_scc1 {lw}")
    chain3.chain_body(a, done, fused=True)
    a(f"{lw}:")
    lane_setup(a)
    a("s_sub_u32 s90, s24, 32")
    tl = a.label("task")
    a(f"{tl}:")
    a("s_cmp_ge_u32 s90, 768")
    a(f"s_cbranch_scc1 {done}")
    lq, lgo = a.label("isq"), a.label("go")
    a("s_cmp_ge_u32 s90, 512")
    a(f"s_cbranch_scc1 {lq}")
    a("s_lshr_b32 s91, s90, 6")
    a("s_and_b32 s70, s90, 63")
    a("s_add_u32 s70, s70, 32")
    a(f"s_branch {lgo}")
    a(f"{lq}:")
    a("s_sub_u32 s70, s90, 512")
    a("s_lshr_b32 s91, s70, 5")
    a("s_and_b32 s70, s70, 31")
    a(f"{lgo}:")
    a("s_lshl_b32 s21, s91, 4")
    a("s_lshl_b32 s22, s70, 3")
    g = k_qkv(a, fused=True)
    lns = a.label("nosig")
    a("s_waitcnt vmcnt(0)")
    a("s_barrier")
    a("s_cmp_ge_u32 s90, 512")
    a(f"s_cbranch_scc1 {lns}")
    a("s_cmp_lg_u32 s20, 0")
    a(f"s_cbranch_scc1 {lns}")
    a("s_lshl_b32 s60, s91, 2")
    a("s_add_u32 s60, s60, 192")
    a("v_mov_b32 v7, s60")
    a("v_mov_b32 v8, 1")
    a("s_mov_b64 exec, 1")
    a("buffer_atomic_add v8, v7, s[12:15], 0 offen")
    a("s_mov_b64 exec, -1")
    a(f"{lns}:")
    a("s_add_u32 s90, s90, 224")
    a(f"s_branch {tl}")
    a(f"{done}:")
    a("s_endpgm")
    return name, 512, 256, 163840


def main():
    a = Asm()
    kernels = []
    body = Asm()
    from chain3 import k_chain3
    for fn in (k_prep, k_fused, k_attn, k_wo, k_ln2, k_ffn1, k_down):
        kernels.append(fn(body))
    hdr = open(os.path.join(os.path.dirname(os.path.abspath(__file__)), "header.txt")).read()
    out = hdr
    for (n, vg, grid, lds) in kernels:
        out += f"; @launch kernel={n} grid=({grid},1,1) block=(256,1,1) lds={lds}\n"
    out += '.amdgcn_target "amdgcn-amd-amdhsa--gfx950"\n.text\n'
    out += body.text()
    out += '.section .rodata,"a"\n'
    for (n, vg, grid, lds) in kernels:
        out += ".p2align 6\n" + kernel_desc(n, vg)
    path = sys.argv[1] if len(sys.argv) > 1 else f"cdna_kernels/{NAME}.s"
    open(path, "w").write(out)
    print("wrote", path, len(out))


if __name__ == "__main__":
    main()
```

```python
import os
from asmlib import *

L_MEMS, L_SX, L_OX, L_TR, L_DUMMY, L_WV = 0, 8192, 20480, 22528, 26624, 32768
SPIN_MAX = 1 << 22
SCALE_LOG2E = (128 ** -0.5) * 1.4426950408889634
import struct


def f32(x):
    return "0x%08x" % struct.unpack("<I", struct.pack("<f", x))[0]


class LdsQ:
    def __init__(self, a):
        self.a = a
        self.n = 0
        self.done = 0

    def op(self, s):
        self.a(s)
        self.n += 1
        return self.n - 1

    def wait(self, idx):
        if idx < self.done:
            return
        k = self.n - idx - 1
        if k > 15:
            k = 15
        self.a(f"s_waitcnt lgkmcnt({k})")
        self.done = self.n - k

    def wait_all(self):
        self.a("s_waitcnt lgkmcnt(0)")
        self.done = self.n


def role_assign(a, done, lds_tmp):
    a("s_getreg_b32 s21, hwreg(HW_REG_XCC_ID)")
    a("s_and_b32 s21, s21, 15")
    lbar = a.label("role_bar")
    a("s_cmp_lg_u32 s20, 0")
    a(f"s_cbranch_scc1 {lbar}")
    a("v_mov_b32 v6, 1")
    a("v_mov_b32 v7, 0")
    a("v_mov_b32 v8, 4")
    a("s_mov_b64 s[22:23], exec")
    a("s_mov_b64 exec, 1")
    lnx, lgot, lA2 = a.label("notx0"), a.label("gotrole"), a.label("takeA")
    a("s_cmp_lg_u32 s21, 0")
    a(f"s_cbranch_scc1 {lnx}")
    a("buffer_atomic_add v6, v7, s[12:15], 0 offen sc0")
    a("s_waitcnt vmcnt(0)")
    a("v_readfirstlane_b32 s24, v6")
    a("s_cmp_lt_u32 s24, 32")
    a(f"s_cbranch_scc1 {lgot}")
    a("v_mov_b32 v6, 1")
    a("buffer_atomic_add v6, v8, s[12:15], 0 offen sc0")
    a("s_waitcnt vmcnt(0)")
    a("v_readfirstlane_b32 s24, v6")
    a("s_add_u32 s24, s24, 32")
    a(f"s_branch {lgot}")
    a(f"{lnx}:")
    a("buffer_atomic_add v6, v8, s[12:15], 0 offen sc0")
    a("s_waitcnt vmcnt(0)")
    a("v_readfirstlane_b32 s24, v6")
    a("s_cmp_ge_u32 s24, 224")
    a(f"s_cbranch_scc1 {lA2}")
    a("s_add_u32 s24, s24, 32")
    a(f"s_branch {lgot}")
    a(f"{lA2}:")
    a("v_mov_b32 v6, 1")
    a("buffer_atomic_add v6, v7, s[12:15], 0 offen sc0")
    a("s_waitcnt vmcnt(0)")
    a("v_readfirstlane_b32 s24, v6")
    a(f"{lgot}:")
    a("v_mov_b32 v6, s24")
    a(f"v_mov_b32 v7, {lds_tmp}")
    a("ds_write_b32 v7, v6")
    a("s_waitcnt lgkmcnt(0)")
    a("s_mov_b64 exec, s[22:23]")
    a(f"{lbar}:")
    a("s_barrier")
    a(f"v_mov_b32 v7, {lds_tmp}")
    a("ds_read_b32 v6, v7")
    a("s_waitcnt lgkmcnt(0)")
    a("v_readfirstlane_b32 s24, v6")
    a("s_barrier")


def chain_body(a, done, fused=False):
    lsk = a.label("nopub")
    a("s_cmp_lg_u32 s20, 0")
    a(f"s_cbranch_scc1 {lsk}")
    a("s_cmp_eq_u32 s21, 0")
    a("s_cselect_b32 s25, 1, 2")
    a("v_mov_b32 v6, s25")
    a("s_lshl_b32 s25, s24, 2")
    a("s_add_u32 s25, s25, 64")
    a("v_mov_b32 v7, s25")
    a("s_mov_b64 s[22:23], exec")
    a("s_mov_b64 exec, 1")
    a("buffer_store_dword v6, v7, s[12:15], 0 offen sc1")
    a("s_mov_b64 exec, s[22:23]")
    a(f"{lsk}:")
    a("v_and_b32 v1, 63, v0")
    a("v_and_b32 v2, 15, v1")
    a("v_lshrrev_b32 v3, 4, v1")
    a("v_lshlrev_b32 v4, 4, v1")
    for mat in range(2):
        for t in range(2):
            a("s_lshl_b32 s25, s24, 3")
            a("s_lshl_b32 s26, s20, 1")
            a("s_add_u32 s25, s25, s26")
            a(f"s_add_u32 s25, s25, {mat*256+t}")
            a("s_lshl_b32 s25, s25, 14")
            a(f"s_add_u32 s25, s25, {WS['WQKV']}")
            for kb in range(16):
                idx = [256, 384][mat] + (t * 16 + kb) * 4
                if kb % 4 == 0 and kb:
                    a("s_add_u32 s25, s25, 4096")
                a(f"buffer_load_dwordx4 {reg(idx,4)}, v4, s[8:11], s25 offen offset:{(kb%4)*1024}")
    for i in range(8):
        a("s_lshl_b32 s25, s20, 3")
        a(f"s_add_u32 s25, s25, {i}")
        a("s_lshl_b32 s25, s25, 7")
        a("s_lshl_b32 s26, s24, 2")
        a("s_add_u32 s25, s25, s26")
        a("s_lshl_b32 s25, s25, 10")
        a(f"s_add_u32 s25, s25, {WS['WO']}")
        for kb in range(4):
            a(f"buffer_load_dwordx4 {vr(128+16*i+4*kb,4)}, v4, s[8:11], s25 offen offset:{kb*1024}")
    for t in range(2):
        a("s_lshl_b32 s25, s24, 3")
        a("s_lshl_b32 s26, s20, 1")
        a("s_add_u32 s25, s25, s26")
        a(f"s_add_u32 s25, s25, {512+t}")
        a("s_lshl_b32 s25, s25, 14")
        a(f"s_add_u32 s25, s25, {WS['WQKV']}")
        a("s_lshl_b32 s26, s20, 15")
        for k4 in range(4):
            a(f"s_add_u32 m0, s26, {L_WV + t*16384 + k4*4096}")
            a("s_nop 0")
            for kb in range(4):
                a(f"buffer_load_dwordx4 v4, s[8:11], s25 offen offset:{kb*1024} lds")
            a("s_add_u32 s25, s25, 4096")
    a("s_mov_b32 s27, 0")
    lp = a.label("modepoll")
    a("v_lshlrev_b32 v6, 2, v1")
    a("v_and_b32 v6, 127, v6")
    a(f"{lp}:")
    a("buffer_load_dword v7, v6, s[12:15], 0 offen offset:64 sc1")
    a("s_waitcnt vmcnt(0)")
    a("s_add_u32 s27, s27, 1")
    a(f"s_cmp_gt_u32 s27, {SPIN_MAX}")
    a(f"s_cbranch_scc1 {done}")
    a("v_cmp_eq_u32 vcc, 0, v7")
    a(f"s_cbranch_vccnz {lp}")
    a("v_cmp_eq_u32 vcc, 2, v7")
    a("s_cmp_lg_u64 vcc, 0")
    a("s_cselect_b32 s28, 1, 0")
    MEMF, QA, KA, VA, WVB = 8, 40, 48, 56, 64
    KX, VX, S = 96, 104, 112
    RD, MO, IDX, OXW = 124, 125, 126, 127
    a("v_and_b32 v8, 7, v2")
    a("v_lshrrev_b32 v9, 3, v2")
    a("v_and_b32 v10, 1, v3")
    a("v_lshrrev_b32 v11, 1, v3")
    a("v_cmp_gt_u32 s[44:45], 2, v3")
    a("v_cmp_gt_u32 vcc, 8, v2")
    a(f"v_mov_b32 v{IDX}, 0xeeee")
    a("v_mov_b32 v12, 0x4444")
    a(f"v_cndmask_b32 v{IDX}, v{IDX}, v12, vcc")
    a("v_lshlrev_b32 v13, 10, v8")
    a("v_lshl_add_u32 v13, v3, 5, v13")
    a("v_lshl_add_u32 v13, v9, 2, v13")
    a("s_and_b32 s25, s20, 1")
    a("s_lshl_b32 s25, s25, 1")
    a("v_add_u32 v14, s25, v11")
    a("v_lshl_add_u32 v14, v14, 4, v8")
    a("v_lshlrev_b32 v14, 4, v14")
    a("v_lshl_add_u32 v14, v10, 3, v14")
    a("s_lshr_b32 s25, s20, 1")
    a("s_lshl_b32 s25, s25, 10")
    a(f"s_add_u32 s25, s25, {L_OX}")
    a("v_add_u32 v14, s25, v14")
    a(f"v_add_u32 v15, {L_DUMMY}, v4")
    a(f"v_cndmask_b32 v{OXW}, v15, v14, vcc")
    a("v_lshlrev_b32 v7, 4, v2")
    a("v_lshl_add_u32 v7, v10, 3, v7")
    a("v_lshl_add_u32 v7, v11, 13, v7")
    a("s_lshl_b32 s25, s24, 8")
    a("v_add_u32 v7, s25, v7")
    a("v_lshl_add_u32 v6, v11, 4, v2")
    a("v_lshlrev_b32 v6, 4, v6")
    a("v_lshl_add_u32 v6, v10, 3, v6")
    a("s_lshl_b32 s25, s20, 10")
    a(f"s_add_u32 s25, s25, {L_TR}")
    a("v_add_u32 v6, s25, v6")
    a("v_lshrrev_b32 v16, 2, v2")
    a("v_lshl_add_u32 v16, v3, 2, v16")
    a("v_lshlrev_b32 v16, 4, v16")
    a("v_and_b32 v17, 3, v1")
    a("v_lshl_add_u32 v16, v17, 3, v16")
    a("v_add_u32 v0, s25, v16")
    a("v_lshrrev_b32 v16, 3, v1")
    a(f"v_lshlrev_b32 v{RD}, 10, v16")
    a("v_and_b32 v16, 1, v1")
    a("v_bfe_u32 v17, v1, 1, 1")
    a("v_bfe_u32 v18, v1, 2, 1")
    a("v_lshl_add_u32 v19, v18, 1, v16")
    a(f"v_lshl_add_u32 v{RD}, v19, 4, v{RD}")
    a(f"v_lshl_add_u32 v{RD}, v17, 3, v{RD}")
    a("s_lshl_b32 s25, s24, 13")
    a("s_lshl_b32 s26, s20, 6")
    a("s_add_u32 s25, s25, s26")
    a(f"v_add_u32 v{RD}, s25, v{RD}")
    a("v_lshlrev_b32 v19, 2, v17")
    a("v_lshl_add_u32 v19, v18, 3, v19")
    a(f"v_lshlrev_b32 v{MO}, 4, v19")
    a("s_lshr_b32 s25, s24, 2")
    a("s_lshl_b32 s25, s25, 10")
    a("s_and_b32 s26, s24, 3")
    a("s_lshl_b32 s26, s26, 8")
    a("s_add_u32 s25, s25, s26")
    a("s_lshl_b32 s26, s20, 2")
    a("s_add_u32 s25, s25, s26")
    a(f"v_add_u32 v{MO}, s25, v{MO}")
    a("v_lshlrev_b32 v19, 1, v10")
    a("v_add_u32 v19, v19, v11")
    a(f"v_lshl_add_u32 v{MO}, v19, 4, v{MO}")
    a("s_mov_b32 s46, 0x00550055")
    a("s_mov_b32 s47, 0x00550055")
    a("s_lshl_b32 s25, s20, 11")
    a("v_add_u32 v5, s25, v4")
    a("v_lshl_add_u32 v16, v3, 4, v8")
    a("v_lshlrev_b32 v16, 4, v16")
    a("v_lshl_add_u32 v3, v9, 3, v16")
    a("v_add_u32 v9, 1, v9")
    a("v_lshl_add_u32 v2, v9, 10, v16")
    a("s_lshl_b32 s25, s20, 15")
    a(f"s_add_u32 s25, s25, {L_WV}")
    a("v_add_u32 v1, s25, v4")
    a("s_lshl_b32 s30, s24, 2")
    a("s_add_u32 s30, s30, s20")
    a("s_lshl_b32 s31, s30, 10")
    a("s_lshl_b32 s30, s30, 11")
    a("s_mul_i32 s43, s20, 3072")
    a("s_mov_b32 s29, 0")

    def wait_kv(s_seg):
        lp = a.label("kvwait")
        a(f"s_lshr_b32 s25, {s_seg}, 3")
        a("s_lshl_b32 s25, s25, 2")
        a("s_add_u32 s25, s25, 192")
        a("v_mov_b32 v120, 0")
        a(f"{lp}:")
        a("buffer_load_dword v121, v120, s[12:15], s25 offen sc1")
        a("s_add_u32 s27, s27, 1")
        a(f"s_cmp_gt_u32 s27, {SPIN_MAX}")
        a(f"s_cbranch_scc1 {done}")
        a("s_waitcnt vmcnt(0)")
        a("v_readfirstlane_b32 s26, v121")
        a("s_cmp_lt_u32 s26, 64")
        a(f"s_cbranch_scc1 {lp}")

    def load_kv():
        sc = ""
        a("s_lshl_b32 s25, s29, 18")
        a("s_add_u32 s25, s25, s30")
        a(f"s_add_u32 s26, s25, {WS['KF']}")
        a(f"buffer_load_dwordx4 v[{KX}:{KX+3}], v4, s[8:11], s26 offen{sc}")
        a(f"buffer_load_dwordx4 v[{KX+4}:{KX+7}], v4, s[8:11], s26 offen offset:1024{sc}")
        a(f"s_add_u32 s26, s25, {WS['VF']}")
        a(f"buffer_load_dwordx4 v[{VX}:{VX+3}], v4, s[8:11], s26 offen{sc}")
        a(f"buffer_load_dwordx4 v[{VX+4}:{VX+7}], v4, s[8:11], s26 offen offset:1024{sc}")
    a("v_mov_b32 v100, v13")
    for kap in range(8):
        for q in range(4):
            a(f"buffer_load_dword v{MEMF+4*kap+q}, v100, s[16:19], 0 offen offset:{kap*128+q*8}")
    a("s_waitcnt vmcnt(0)")
    if fused:
        wait_kv("s29")
    load_kv()
    for i in range(0, 24, 2):
        a(f"v_mov_b64 v[{QA+i}:{QA+i+1}], 0")
    a("s_waitcnt vmcnt(0) lgkmcnt(0)")
    a("s_barrier")
    PROF = os.environ.get("CH_PROF")

    def stamp(i):
        if PROF:
            a("s_memtime s[50:51]")
            a("s_waitcnt lgkmcnt(0)")
            a(f"s_mov_b32 s{60+i}, s50")

    def mfma(d, x, y, c):
        a(f"v_mfma_f32_16x16x32_bf16 {d}, {x}, {y}, {c}")

    def smf(d, x, y):
        a(f"v_smfmac_f32_16x16x64_bf16 {d}, {x}, {y}, v{IDX}")

    DPP8 = "row_ror:8 row_mask:0xf bank_mask:0xf"

    FSC = " sc1" if (fused and not os.environ.get("EXP_PLAIN")) else ""
    llast = a.label("chain_last")

    def seg_signal(s_seg_plus1, vt=18):
        a(f"s_lshl_b32 s25, {s_seg_plus1}, 9")
        a("s_lshr_b32 s26, s31, 8")
        a("s_add_u32 s25, s25, s26")
        a(f"s_add_u32 s25, s25, {WS['FLG']-512}")
        a(f"v_mov_b32 v{vt+2}, 0")
        a(f"v_mov_b32 v{vt+3}, 1")
        a("s_mov_b64 exec, 1")
        a(f"buffer_store_dword v{vt+3}, v{vt+2}, s[8:11], s25 offen sc1")
        a("s_mov_b64 exec, -1")

    def bookkeeping():
        a("s_and_b32 s25, s29, 1")
        a("s_lshl_b32 s25, s25, 18")
        a(f"s_add_u32 s33, s25, {WS['PART']}")
        a("s_lshl_b32 s25, s20, 16")
        a("s_add_u32 s34, s33, s25")
        a("s_add_u32 s26, s29, 1")
        a("s_mul_i32 s25, s26, 21846")
        a("s_lshr_b32 s25, s25, 16")
        a("s_mul_i32 s25, s25, 3")
        a("s_sub_u32 s25, s26, s25")
        a("s_lshl_b32 s35, s25, 13")
        a(f"s_add_u32 s35, s35, {WS['MEMX']}")
        a("s_add_u32 s25, s25, 2")
        a("s_cmp_ge_u32 s25, 3")
        a("s_cselect_b32 s26, 3, 0")
        a("s_sub_u32 s25, s25, s26")
        a("s_lshl_b32 s36, s25, 13")
        a(f"s_add_u32 s36, s36, {WS['MEMX']}")
        a("s_lshl_b32 s25, s29, 17")
        a("s_add_u32 s25, s25, s31")
        a(f"s_add_u32 s37, s25, {WS['KMF']}")
        a(f"s_add_u32 s38, s25, {WS['VMF']}")
        for i in range(4):
            a(f"s_add_u32 s{52+i}, s34, {i*16384}")

    def step_loop(sc):
        q = LdsQ(a)
        bookkeeping()
        lq = a.label("qkv")
        loop = a.label("step")
        a(f"s_branch {lq}")
        a(f"{loop}:")
        stamp(0)
        lp = a.label("mempoll")
        a(f"{lp}:")
        a("buffer_load_dwordx4 v[8:11], v5, s[8:11], s32 offen sc1")
        a("buffer_load_dwordx4 v[12:15], v5, s[8:11], s32 offen offset:1024 sc1")
        for i in range(0, 24, 2):
            a(f"v_mov_b64 v[{QA+i}:{QA+i+1}], 0")
        bookkeeping()
        a("s_add_u32 s27, s27, 1")
        a(f"s_cmp_gt_u32 s27, {SPIN_MAX}")
        a(f"s_cbranch_scc1 {done}")
        a("s_waitcnt vmcnt(0)")
        a("v_max3_u32 v16, v8, v9, v10")
        a("v_max3_u32 v17, v11, v12, v13")
        a("v_max3_u32 v16, v16, v14, v15")
        a("v_max_u32 v16, v16, v17")
        a("v_cmp_eq_u32 vcc, -1, v16")
        a(f"s_cbranch_vccnz {lp}")
        stamp(1)
        a("ds_write_b128 v5, v[8:11]")
        a("ds_write_b128 v5, v[12:15] offset:1024")
        a("s_waitcnt lgkmcnt(0)")
        a("s_barrier")
        mr = []
        for kap in range(8):
            mr.append(q.op(f"ds_read_b128 v[{MEMF+4*kap}:{MEMF+4*kap+3}], v4 offset:{L_MEMS+kap*1024}"))
        a(f"{lq}:")
        wv = {}

        def wv_read(n):
            kap, t = n >> 1, n & 1
            b = WVB + 8 * (n % 4)
            q.op(f"ds_read_b128 v[{b}:{b+3}], v1 offset:{t*16384+(2*kap)*1024}")
            wv[n] = q.op(f"ds_read_b128 v[{b+4}:{b+7}], v1 offset:{t*16384+(2*kap+1)*1024}")
        for n in range(4):
            wv_read(n)
        stamp(2)
        for kap in range(8):
            q.wait(mr[kap])
            m = vr(MEMF + 4 * kap, 4)
            for t in range(2):
                smf(vr(QA+4*t,4), m, reg(256+(t*16+2*kap)*4,8))
                smf(vr(KA+4*t,4), m, reg(384+(t*16+2*kap)*4,8))
            if kap == 7:
                a(f"v_add_u32 v123, s43, v4")
            if kap == 6:
                lz = a.label("noreset")
                a("s_cmp_eq_u32 s29, 0")
                a(f"s_cbranch_scc1 {lz}")
                a("v_mov_b32 v120, -1")
                a("v_mov_b32 v121, -1")
                for j in range(4):
                    a(f"buffer_store_dwordx2 v[120:121], v{RD}, s[8:11], s39 offen offset:{j*256}{sc}")
                a("s_mov_b64 exec, s[46:47]")
                a(f"buffer_store_dword v120, v{MO}, s[8:11], s49 offen{sc}")
                a("s_mov_b64 exec, -1")
                if fused and not os.environ.get("EXP_NOSIG"):
                    seg_signal("s29", 120)
                a(f"{lz}:")
            if kap == 5:
                if fused:
                    lk = a.label("kvok")
                    a("s_add_u32 s92, s29, 2")
                    a("s_and_b32 s25, s92, 7")
                    a("s_cmp_lg_u32 s25, 0")
                    a(f"s_cbranch_scc1 {lk}")
                    a("s_cmp_ge_u32 s92, 64")
                    a(f"s_cbranch_scc1 {lk}")
                    wait_kv("s92")
                    a(f"{lk}:")
                a("v_and_b32 v120, 0xf0, v4")
                a("v_lshlrev_b32 v120, 3, v120")
                a("v_bfe_u32 v121, v4, 8, 1")
                a(f"v_lshl_add_u32 v120, v121, 24, v120")
                a("s_add_u32 s25, s29, 2")
                a("s_lshl_b32 s25, s25, 18")
                a("s_add_u32 s25, s25, s30")
                a(f"s_add_u32 s25, s25, {WS['KF']}")
                a(f"s_mov_b32 m0, {L_DUMMY+2048}")
                a("s_nop 0")
                a("buffer_load_dword v120, s[8:11], s25 offen lds")

        def vop(n):
            kap, t = n >> 1, n & 1
            q.wait(wv[n])
            smf(vr(VA+4*t,4), vr(MEMF+4*kap,4), vr(WVB+8*(n%4),8))
            if n + 4 < 16:
                wv_read(n + 4)
        for n in range(4):
            vop(n)
        stamp(3)
        for i in range(4):
            a(f"v_permlane32_swap_b32 v{QA+i}, v{QA+4+i}")
            a(f"v_permlane32_swap_b32 v{KA+i}, v{KA+4+i}")
            vop(4 + i)
        for b in (QA, KA):
            a(f"v_pk_add_f32 v[{b}:{b+1}], v[{b}:{b+1}], v[{b+4}:{b+5}]")
            a(f"v_pk_add_f32 v[{b+2}:{b+3}], v[{b+2}:{b+3}], v[{b+6}:{b+7}]")
        for b in (QA, KA):
            a(f"v_cvt_pk_bf16_f32 v{b+4}, v{b}, v{b+1}")
            a(f"v_cvt_pk_bf16_f32 v{b+5}, v{b+2}, v{b+3}")
        w1 = q.op(f"ds_write_b64 v6, v[{QA+4}:{QA+5}]")
        w2 = q.op(f"ds_write_b64 v6, v[{KA+4}:{KA+5}] offset:512")
        vop(8)
        vop(9)
        q.wait(w2)
        QB, KB = QA, KA
        q.op(f"ds_read_b64_tr_b16 v[{QB}:{QB+1}], v0")
        q.op(f"ds_read_b64_tr_b16 v[{QB+2}:{QB+3}], v0 offset:256")
        q.op(f"ds_read_b64_tr_b16 v[{KB}:{KB+1}], v0 offset:512")
        r4 = q.op(f"ds_read_b64_tr_b16 v[{KB+2}:{KB+3}], v0 offset:768")
        vop(10)
        vop(11)
        q.wait(r4)
        mfma(vr(S,4), vr(KB,4), vr(QB,4), "0")
        mfma(vr(S+4,4), vr(KX,4), vr(QB,4), "0")
        a(f"v_mov_b32 v{QA+4}, v123")
        mfma(vr(S+8,4), vr(KX+4,4), vr(QB,4), "0")
        a(f"buffer_store_dwordx4 v[{KB}:{KB+3}], v4, s[8:11], s37 offen{FSC}")
        vop(12)
        vop(13)
        vop(14)
        vop(15)
        a("s_nop 3")
        for t in range(3):
            q.op(f"ds_write_b128 v{QA+4}, v[{S+4*t}:{S+4*t+3}] offset:{L_SX+t*1024}")
        q.wait_all()
        a("s_barrier")
        stamp(4)
        X = 8
        for k in range(4):
            q.op(f"ds_read_b128 v[{X+6*k}:{X+6*k+3}], v2 offset:{L_SX+k*3072}")
            q.op(f"ds_read_b64 v[{X+6*k+4}:{X+6*k+5}], v3 offset:{L_SX+k*3072}")
        for i in range(4):
            a(f"v_permlane32_swap_b32 v{VA+i}, v{VA+4+i}")
        a(f"v_pk_add_f32 v[{VA}:{VA+1}], v[{VA}:{VA+1}], v[{VA+4}:{VA+5}]")
        a(f"v_pk_add_f32 v[{VA+2}:{VA+3}], v[{VA+2}:{VA+3}], v[{VA+6}:{VA+7}]")
        a(f"v_cvt_pk_bf16_f32 v{VA}, v{VA}, v{VA+1}")
        a(f"v_cvt_pk_bf16_f32 v{VA+1}, v{VA+2}, v{VA+3}")
        a(f"v_mov_b32 v{VA+4}, v{VA}")
        a(f"v_mov_b32 v{VA+5}, v{VA+1}")
        a(f"v_mov_b64 v[{VA+2}:{VA+3}], 0")
        a(f"v_mov_b64 v[{VA+6}:{VA+7}], 0")
        a(f"v_permlane32_swap_b32 v{VA}, v{VA+4}")
        a(f"v_permlane32_swap_b32 v{VA+1}, v{VA+5}")
        a("v_lshrrev_b32 v46, 1, v4")
        a(f"buffer_store_dwordx2 v[{VA}:{VA+1}], v46, s[8:11], s38 offen{FSC}")
        a(f"buffer_store_dwordx2 v[{VA+4}:{VA+5}], v46, s[8:11], s38 offen offset:512{FSC}")
        a("s_cmp_eq_u32 s29, 63")
        a(f"s_cbranch_scc1 {llast}")
        T = S
        q.wait_all()
        for i in range(0, 6, 2):
            a(f"v_pk_add_f32 v[{X+i}:{X+i+1}], v[{X+i}:{X+i+1}], v[{X+6+i}:{X+7+i}]")
            a(f"v_pk_add_f32 v[{X+12+i}:{X+13+i}], v[{X+12+i}:{X+13+i}], v[{X+18+i}:{X+19+i}]")
        for i in range(0, 6, 2):
            a(f"v_pk_add_f32 v[{T+i}:{T+i+1}], v[{X+i}:{X+i+1}], v[{X+12+i}:{X+13+i}]")
        a("v_mov_b32 v40, 0xff800000")
        a(f"v_cndmask_b32 v{T+4}, v40, v{T+4}, s[44:45]")
        a(f"v_cndmask_b32 v{T+5}, v40, v{T+5}, s[44:45]")
        a(f"v_max3_f32 v40, v{T}, v{T+1}, v{T+2}")
        a(f"v_max3_f32 v41, v{T+3}, v{T+4}, v{T+5}")
        a("v_max_f32 v40, v40, v41")
        a(f"v_mov_b32 v42, {f32(SCALE_LOG2E)}")
        a(f"v_mov_b32 v43, {f32(SCALE_LOG2E)}")
        a(f"v_max_f32_dpp v40, v40, v40 {DPP8}")
        D = WVB
        zi = [0]

        def zero2():
            if zi[0] < 32:
                a(f"v_mov_b64 v[{D+zi[0]}:{D+zi[0]+1}], 0")
                zi[0] += 2
        for sw in ("v_permlane16_swap_b32", "v_permlane32_swap_b32"):
            a("v_mov_b32 v41, v40")
            zero2(); zero2()
            a(f"{sw} v40, v41")
            a("v_max_f32 v40, v40, v41")
        a(f"v_mul_f32 v40, {f32(-SCALE_LOG2E)}, v40")
        a("v_mov_b32 v41, v40")
        for i in range(0, 6, 2):
            a(f"v_pk_fma_f32 v[{T+i}:{T+i+1}], v[{T+i}:{T+i+1}], v[42:43], v[40:41]")
        for i in range(6):
            a(f"v_exp_f32 v{T+i}, v{T+i}")
        PT, PM = 48, 52
        a(f"v_mov_b64 v[{PM+2}:{PM+3}], 0")
        a(f"v_cvt_pk_bf16_f32 v{PT}, v{T}, v{T+1}")
        a(f"v_cvt_pk_bf16_f32 v{PT+1}, v{T+2}, v{T+3}")
        a(f"v_cvt_pk_bf16_f32 v{PM}, v{T+4}, v{T+5}")
        a(f"v_pk_add_f32 v[40:41], v[{T}:{T+1}], v[{T+2}:{T+3}]")
        a(f"v_mov_b32_dpp v{PT+2}, v{PT} {DPP8}")
        a(f"v_mov_b32_dpp v{PT+3}, v{PT+1} {DPP8}")
        a(f"v_mov_b32_dpp v{PM+1}, v{PM} {DPP8}")
        a(f"v_pk_add_f32 v[40:41], v[40:41], v[{T+4}:{T+5}]")
        O = 112
        a("v_add_f32 v40, v40, v41")
        mfma(vr(O,4), vr(VX,4), vr(PT,4), "0")
        zero2()
        mfma(vr(O+4,4), vr(VX+4,4), vr(PT,4), "0")
        zero2()
        mfma(vr(O,4), vr(VA,4), vr(PM,4), vr(O,4))
        zero2()
        mfma(vr(O+4,4), vr(VA+4,4), vr(PM,4), vr(O+4,4))
        a(f"v_add_f32_dpp v40, v40, v40 {DPP8}")
        for sw in ("v_permlane16_swap_b32", "v_permlane32_swap_b32"):
            a("v_mov_b32 v41, v40")
            zero2(); zero2()
            a(f"{sw} v40, v41")
            a("v_add_f32 v40, v40, v41")
        a("v_rcp_f32 v40, v40")
        a("s_add_u32 s29, s29, 1")
        a("v_mov_b32 v41, v40")
        for i in range(0, 8, 2):
            a(f"v_pk_mul_f32 v[{O+i}:{O+i+1}], v[{O+i}:{O+i+1}], v[40:41]")
        a(f"v_cvt_pk_bf16_f32 v120, v{O}, v{O+1}")
        a(f"v_cvt_pk_bf16_f32 v121, v{O+4}, v{O+5}")
        a(f"v_cvt_pk_bf16_f32 v122, v{O+2}, v{O+3}")
        a(f"v_cvt_pk_bf16_f32 v123, v{O+6}, v{O+7}")
        q.op(f"ds_write_b64 v{OXW}, v[120:121]")
        q.op(f"ds_write_b64 v{OXW}, v[122:123] offset:128")
        q.wait_all()
        a("s_barrier")
        stamp(5)
        OFR = 40
        q.op(f"ds_read_b128 v[{OFR}:{OFR+3}], v4 offset:{L_OX}")
        q.op(f"ds_read_b128 v[{OFR+4}:{OFR+7}], v4 offset:{L_OX+1024}")
        while zi[0] < 32:
            zero2()
        load_kv()
        q.wait_all()

        def wo(T_):
            for kap in range(2):
                smf(vr(D+4*T_,4), vr(OFR+4*kap,4), vr(128+16*T_+8*kap,8))

        def post(p, inter=()):
            x, y = D + 8 * p, D + 8 * p + 4
            inter = list(inter)
            for i in range(4):
                a(f"v_permlane32_swap_b32 v{x+i}, v{y+i}")
                if i % 2 == 1 and inter:
                    wo(inter.pop(0))
            a(f"v_pk_add_f32 v[{x}:{x+1}], v[{x}:{x+1}], v[{y}:{y+1}]")
            a(f"v_pk_add_f32 v[{x+2}:{x+3}], v[{x+2}:{x+3}], v[{y+2}:{y+3}]")
            a(f"v_cvt_pk_bf16_f32 v{x}, v{x}, v{x+1}")
            a(f"v_cvt_pk_bf16_f32 v{x+1}, v{x+2}, v{x+3}")
            a(f"v_min_u32 v{x}, 0xfffffffe, v{x}")
            a(f"v_min_u32 v{x+1}, 0xfffffffe, v{x+1}")
            a(f"buffer_store_dwordx2 v[{x}:{x+1}], v7, s[8:11], s{52+p} offen{sc}")
        for T_ in range(6):
            wo(T_)
        post(0, (6, 7))
        post(1)
        post(2)
        post(3)
        stamp(6)
        stamp(7)
        R = 8
        lp = a.label("partpoll")
        a(f"{lp}:")
        for j in range(4):
            a(f"buffer_load_dwordx2 v[{R+2*j}:{R+2*j+1}], v{RD}, s[8:11], s33 offen offset:{j*256} sc1")
        a("s_add_u32 s27, s27, 1")
        a(f"s_cmp_gt_u32 s27, {SPIN_MAX}")
        a(f"s_cbranch_scc1 {done}")
        a("s_waitcnt vmcnt(0)")
        a(f"v_max3_u32 v16, v{R}, v{R+1}, v{R+2}")
        a(f"v_max3_u32 v17, v{R+3}, v{R+4}, v{R+5}")
        a(f"v_max3_u32 v16, v16, v{R+6}, v{R+7}")
        a(f"v_max_u32 v16, v16, v17")
        a("v_cmp_eq_u32 vcc, -1, v16")
        a(f"s_cbranch_vccnz {lp}")
        stamp(8)
        for j in range(4):
            for hlf in range(2):
                src = R + 2 * j + hlf
                a(f"v_lshlrev_b32 v{20+4*j+2*hlf}, 16, v{src}")
                a(f"v_and_b32 v{21+4*j+2*hlf}, 0xffff0000, v{src}")
        for hlf in range(2):
            a(f"v_pk_add_f32 v[{20+2*hlf}:{21+2*hlf}], v[{20+2*hlf}:{21+2*hlf}], v[{24+2*hlf}:{25+2*hlf}]")
            a(f"v_pk_add_f32 v[{28+2*hlf}:{29+2*hlf}], v[{28+2*hlf}:{29+2*hlf}], v[{32+2*hlf}:{33+2*hlf}]")
        for hlf in range(2):
            a(f"v_pk_add_f32 v[{20+2*hlf}:{21+2*hlf}], v[{20+2*hlf}:{21+2*hlf}], v[{28+2*hlf}:{29+2*hlf}]")
        A0 = 20
        a("s_nop 0")
        a("v_permlane32_swap_b32 v20, v21")
        a("v_permlane32_swap_b32 v22, v23")
        a("v_add_f32 v20, v20, v21")
        a("v_add_f32 v22, v22, v23")
        a("s_mov_b32 s39, s33")
        a("s_mov_b32 s49, s36")
        a("v_permlane16_swap_b32 v20, v22")
        a("v_add_f32 v20, v20, v22")
        a("s_nop 1")
        a(f"v_add_f32_dpp v20, v20, v20 {DPP8}")
        a("s_nop 1")
        a("v_mov_b32_dpp v21, v20 quad_perm:[1,0,3,2] row_mask:0xf bank_mask:0xf")
        a("v_cvt_pk_bf16_f32 v20, v20, v21")
        a("v_min_u32 v20, 0xfffffffe, v20")
        a("s_mov_b64 exec, s[46:47]")
        a(f"buffer_store_dword v20, v{MO}, s[8:11], s35 offen{sc}")
        a("s_mov_b64 exec, -1")
        stamp(9)
        if PROF:
            lsk = a.label("noprof")
            a("s_cmp_lg_u32 s29, 21")
            a(f"s_cbranch_scc1 {lsk}")
            for i in range(10):
                a(f"v_mov_b32 v30, s{60+i}")
                a("s_lshl_b32 s25, s24, 2")
                a("s_add_u32 s25, s25, s20")
                a("s_lshl_b32 s25, s25, 6")
                a(f"s_add_u32 s25, s25, {120*MB + 4*i}")
                a("v_mov_b32 v31, 0")
                a("buffer_store_dword v30, v31, s[8:11], s25 offen")
            a(f"{lsk}:")
        a("s_mov_b32 s32, s35")
        a(f"s_branch {loop}")

    lslow = a.label("slowloop")
    a("s_cmp_lg_u32 s28, 0")
    a(f"s_cbranch_scc1 {lslow}")
    step_loop("")
    a(f"{lslow}:")
    step_loop(" sc1")
    a(f"{llast}:")
    if os.environ.get("CH_T"):
        a("s_memrealtime s[88:89]")
        a("s_waitcnt lgkmcnt(0)")
        for i, sr_ in enumerate((80, 88)):
            a(f"v_mov_b32 v30, s{sr_}")
            a("s_lshl_b32 s25, s24, 2")
            a("s_add_u32 s25, s25, s20")
            a("s_lshl_b32 s25, s25, 6")
            a(f"s_add_u32 s25, s25, {121*MB + 4*i}")
            a("v_mov_b32 v31, 0")
            a("buffer_store_dword v30, v31, s[8:11], s25 offen")
    if fused:
        a("s_waitcnt vmcnt(0)")
        a("s_mov_b32 s92, 64")
        seg_signal("s92")
    a(f"s_branch {done}")


def k_chain3(a):
    name = "chain_kernel"
    kernel_header(a, name)
    done = a.label("chain_done")
    a("s_cmp_ge_u32 s2, 256")
    a(f"s_cbranch_scc1 {done}")
    a("v_lshrrev_b32 v1, 6, v0")
    a("s_nop 0")
    a("v_readfirstlane_b32 s20, v1")
    load_srd(a, 8, "ws", None)
    load_srd(a, 12, "dbg", None)
    load_srd(a, 16, "mem0", None)
    role_assign(a, done, L_DUMMY)
    a("s_cmp_ge_u32 s24, 32")
    a(f"s_cbranch_scc1 {done}")
    chain_body(a, done)
    a(f"{done}:")
    a("s_endpgm")
    return name, 512, 256, 163840
```

```python
import sys, os
sys.path.insert(0, os.path.dirname(os.path.abspath(__file__)))
from asmlib import *

NAME = "sequential_preLN__memory_aug_recurrent_mem_tr__glu_gated_geglu__prompt"
SCALE_LOG2E = (128 ** -0.5) * 1.4426950408889634
import struct


def f32(x):
    return "0x%08x" % struct.unpack("<I", struct.pack("<f", x))[0]


def lane_setup(a, vl=1, vr_=2, vg=3, vl16=4):
    a(f"v_and_b32 v{vl}, 63, v0")
    a(f"v_and_b32 v{vr_}, 15, v{vl}")
    a(f"v_lshrrev_b32 v{vg}, 4, v{vl}")
    a(f"v_lshlrev_b32 v{vl16}, 4, v{vl}")


def wave_id(a, sdst, vtmp):
    a(f"v_lshrrev_b32 v{vtmp}, 6, v0")
    a("s_nop 0")
    a(f"v_readfirstlane_b32 s{sdst}, v{vtmp}")


def xred_g(a, x, t, op="v_add_f32"):
    a(f"v_mov_b32 v{t}, v{x}")
    a("s_nop 1")
    a(f"v_permlane16_swap_b32 v{x}, v{t}")
    a(f"{op} v{x}, v{x}, v{t}")
    a(f"v_mov_b32 v{t}, v{x}")
    a("s_nop 1")
    a(f"v_permlane32_swap_b32 v{x}, v{t}")
    a(f"{op} v{x}, v{x}, v{t}")


def ln_tile(a, srd_src, s_src, srd_ws, s_dst, sc=""):
    a("v_lshlrev_b32 v5, 10, v2")
    a("v_lshl_add_u32 v5, v3, 4, v5")
    for kb in range(16):
        a(f"buffer_load_dwordx4 v[{16+4*kb}:{19+4*kb}], v5, s[{srd_src}:{srd_src+3}], s{s_src} offen offset:{kb*64}{sc}")
    a("s_waitcnt vmcnt(0)")
    a("v_mov_b32 v6, 0")
    a("v_mov_b32 v9, 0")
    for d in range(16, 80):
        a(f"v_lshlrev_b32 v7, 16, v{d}")
        a(f"v_and_b32 v8, 0xffff0000, v{d}")
        a("v_add_f32 v6, v6, v7")
        a("v_add_f32 v9, v9, v8")
    a("v_add_f32 v6, v6, v9")
    xred_g(a, 6, 7)
    a(f"v_mul_f32 v6, {f32(1.0/512)}, v6")
    a("v_mov_b32 v10, 0")
    a("v_mov_b32 v9, 0")
    for d in range(16, 80):
        a(f"v_lshlrev_b32 v7, 16, v{d}")
        a(f"v_and_b32 v8, 0xffff0000, v{d}")
        a("v_sub_f32 v7, v7, v6")
        a("v_sub_f32 v8, v8, v6")
        a("v_fmac_f32 v10, v7, v7")
        a("v_fmac_f32 v9, v8, v8")
    a("v_add_f32 v10, v10, v9")
    xred_g(a, 10, 7)
    a(f"v_mov_b32 v11, {f32(1e-5)}")
    a(f"v_fmac_f32 v11, {f32(1.0/512)}, v10")
    a("v_rsq_f32 v11, v11")
    a("s_nop 0")
    for d in range(16, 80):
        a(f"v_lshlrev_b32 v7, 16, v{d}")
        a(f"v_and_b32 v8, 0xffff0000, v{d}")
        a("v_sub_f32 v7, v7, v6")
        a("v_sub_f32 v8, v8, v6")
        a("v_mul_f32 v7, v7, v11")
        a("v_mul_f32 v8, v8, v11")
        a(f"v_cvt_pk_bf16_f32 v{d}, v7, v8")
    for kb in range(16):
        a(f"buffer_store_dwordx4 v[{16+4*kb}:{19+4*kb}], v4, s[{srd_ws}:{srd_ws+3}], s{s_dst} offen{sc}")
        if kb < 15:
            a(f"s_add_u32 s{s_dst}, s{s_dst}, 1024")


def k_prep(a):
    name = "prep_kernel"
    kernel_header(a, name)
    done = a.label("prep_done")
    a("s_cmp_ge_u32 s2, 1024")
    a(f"s_cbranch_scc1 {done}")
    a("s_load_dwordx16 s[36:51], s[0:1], 0")
    a("s_load_dwordx8 s[52:59], s[0:1], 64")
    wave_id(a, 3, 1)
    a("s_lshl_b32 s4, s2, 2")
    a("s_add_u32 s3, s3, s4")
    lane_setup(a)
    load_srd(a, 8, "ws", None)
    load_srd(a, 12, "x", None)
    skip = a.label("noinit")
    a(f"s_cmp_ge_u32 s3, {EXCH_BYTES//1024}")
    a(f"s_cbranch_scc1 {skip}")
    a("v_mov_b32 v16, -1\nv_mov_b32 v17, -1\nv_mov_b32 v18, -1\nv_mov_b32 v19, -1")
    a("s_lshl_b32 s4, s3, 10")
    a(f"s_add_u32 s4, s4, {WS['PART']}")
    a("buffer_store_dwordx4 v[16:19], v4, s[8:11], s4 offen")
    a(f"{skip}:")
    skip = a.label("nocnt")
    a(f"s_sub_u32 s4, s3, {EXCH_BYTES//1024}")
    a("s_cmp_ge_u32 s4, 96")
    a(f"s_cbranch_scc1 {skip}")
    a("v_mov_b32 v16, 0\nv_mov_b32 v17, 0\nv_mov_b32 v18, 0\nv_mov_b32 v19, 0")
    a("s_lshl_b32 s4, s4, 10")
    a(f"s_add_u32 s4, s4, {WS['CNT']}")
    a("buffer_store_dwordx4 v[16:19], v4, s[8:11], s4 offen")
    a(f"{skip}:")
    skip = a.label("noln")
    a("s_cmp_ge_u32 s3, 128")
    a(f"s_cbranch_scc1 {skip}")
    a("s_lshl_b32 s4, s3, 14")
    a(f"s_add_u32 s5, s4, {WS['XN']}")
    ln_tile(a, 12, 4, 8, 5)
    a(f"{skip}:")
    a("s_mov_b32 s20, s3")
    loop = a.label("rl_loop")
    common = a.label("rl_common")
    cB, cC, cD = a.label("cB"), a.label("cC"), a.label("cD")
    a(f"{loop}:")
    a("s_cmp_ge_u32 s20, 20608")
    a(f"s_cbranch_scc1 {done}")
    a("s_mov_b32 s27, 0x00020000")
    a("s_cmp_ge_u32 s20, 12288")
    a(f"s_cbranch_scc1 {cB}")
    a("s_lshr_b32 s33, s20, 12")
    a("s_cmp_eq_u32 s33, 1")
    a("s_cselect_b32 s24, s42, s40")
    a("s_cselect_b32 s25, s43, s41")
    a("s_cmp_eq_u32 s33, 2")
    a("s_cselect_b32 s24, s44, s24")
    a("s_cselect_b32 s25, s45, s25")
    a(f"s_mov_b32 s26, {SIZE['wq']}")
    a("s_mov_b32 s28, 8192")
    a("s_and_b32 s29, s20, 15")
    a("s_lshl_b32 s29, s29, 5")
    a("s_lshr_b32 s30, s20, 4")
    a("s_and_b32 s30, s30, 255")
    a("s_lshl_b32 s30, s30, 4")
    a("s_mov_b32 s31, 0")
    a("s_lshl_b32 s32, s20, 10")
    a(f"s_add_u32 s32, s32, {WS['WQKV']}")
    a(f"s_branch {common}")
    a(f"{cB}:")
    a("s_cmp_ge_u32 s20, 16384")
    a(f"s_cbranch_scc1 {cC}")
    a("s_sub_u32 s33, s20, 12288")
    a("s_mov_b32 s24, s46\ns_mov_b32 s25, s47")
    a(f"s_mov_b32 s26, {SIZE['wo']}")
    a("s_mov_b32 s28, 1024")
    a("s_and_b32 s29, s33, 127")
    a("s_lshl_b32 s29, s29, 5")
    a("s_lshr_b32 s30, s33, 7")
    a("s_lshl_b32 s30, s30, 4")
    a("s_mov_b32 s31, 1")
    a("s_lshl_b32 s32, s33, 10")
    a(f"s_add_u32 s32, s32, {WS['WO']}")
    a(f"s_branch {common}")
    a(f"{cC}:")
    a("s_cmp_ge_u32 s20, 19200")
    a(f"s_cbranch_scc1 {cD}")
    a("s_sub_u32 s33, s20, 16384")
    a("s_cmp_ge_u32 s33, 1408")
    a("s_cselect_b32 s24, s54, s52")
    a("s_cselect_b32 s25, s55, s53")
    a(f"s_mov_b32 s32, {WS['WG']}")
    a(f"s_cselect_b32 s32, {WS['WU']}, s32")
    a("s_cselect_b32 s34, 1408, 0")
    a("s_sub_u32 s33, s33, s34")
    a("s_mov_b32 s28, 2752")
    a("s_and_b32 s29, s33, 15")
    a("s_lshl_b32 s29, s29, 5")
    a("s_lshr_b32 s30, s33, 4")
    a("s_cmp_lt_u32 s30, 86")
    a(f"s_cselect_b32 s26, {SIZE['wg']}, 0")
    a("s_lshl_b32 s30, s30, 4")
    a("s_mov_b32 s31, 0")
    a("s_lshl_b32 s33, s33, 10")
    a("s_add_u32 s32, s32, s33")
    a(f"s_branch {common}")
    a(f"{cD}:")
    a("s_sub_u32 s33, s20, 19200")
    a("s_mov_b32 s24, s56\ns_mov_b32 s25, s57")
    a("s_mul_i32 s30, s33, 1490")
    a("s_lshr_b32 s30, s30, 16")
    a("s_mul_i32 s34, s30, 44")
    a("s_sub_u32 s29, s33, s34")
    a("s_cmp_lt_u32 s29, 43")
    a(f"s_cselect_b32 s26, {SIZE['wd']}, 0")
    a("s_lshl_b32 s29, s29, 5")
    a("s_lshl_b32 s30, s30, 4")
    a("s_mov_b32 s28, 1024")
    a("s_mov_b32 s31, 1")
    a("s_lshl_b32 s32, s33, 10")
    a(f"s_add_u32 s32, s32, {WS['WD']}")
    a(f"{common}:")
    a("s_and_b32 s25, s25, 0xffff")
    a("s_sub_u32 s33, 3, s31")
    a("v_lshlrev_b32 v6, s33, v3")
    a("v_add_u32 v6, s29, v6")
    a("v_mul_lo_u32 v6, v6, s28")
    a("v_add_u32 v7, s30, v2")
    a("v_lshl_add_u32 v6, v7, 1, v6")
    a("s_mul_i32 s33, s31, 12")
    for j in range(8):
        if j < 4:
            a(f"s_mul_i32 s{60+j}, s28, {j}")
        else:
            a(f"s_add_u32 s34, s33, {j}")
            a(f"s_mul_i32 s{60+j}, s28, s34")
    for j in range(8):
        a(f"buffer_load_ushort v{8+j}, v6, s[24:27], s{60+j} offen")
    a("s_waitcnt vmcnt(0)")
    for j in range(4):
        a(f"v_lshl_or_b32 v{16+j}, v{9+2*j}, 16, v{8+2*j}")
    a("buffer_store_dwordx4 v[16:19], v4, s[8:11], s32 offen")
    a("s_add_u32 s20, s20, 4096")
    a(f"s_branch {loop}")
    a(f"{done}:")
    a("s_endpgm")
    return name, 80, 1024, 0


def k_ln2(a):
    name = "ln2_kernel"
    kernel_header(a, name)
    done = a.label("ln2_done")
    a("s_cmp_ge_u32 s2, 32")
    a(f"s_cbranch_scc1 {done}")
    wave_id(a, 3, 1)
    a("s_lshl_b32 s4, s2, 2")
    a("s_add_u32 s3, s3, s4")
    lane_setup(a)
    load_srd(a, 8, "ws", None)
    a("s_lshl_b32 s4, s3, 14")
    a(f"s_add_u32 s5, s4, {WS['HN']}")
    a(f"s_add_u32 s4, s4, {WS['H']}")
    ln_tile(a, 8, 4, 8, 5)
    a(f"{done}:")
    a("s_endpgm")
    return name, 80, 32, 0


class G:
    pass


def gemm_core(a, name, MT, NT, KG, NST, a_base, a_stride, bmap, b_stride, orient, epilogue, a_sc="", lead_barrier=False,
              NS=3, k0=None, WM=2, tile_addr=None, all_sc=None):
    WN = 4 // WM
    MTw, NTw = MT // WM, NT // WN
    g = G()
    g.MTw, g.NTw = MTw, NTw
    ACC = 16
    F0 = ACC + MTw * NTw * 4
    PER = MTw + NTw
    g.vtop = F0 + PER * 4 * KG
    g.acc = lambda mi, ni: ACC + (mi * NTw + ni) * 4
    if WM == 2:
        a("s_lshr_b32 s23, s20, 1")
        a("s_and_b32 s24, s20, 1")
    else:
        a("s_mov_b32 s23, s20")
        a("s_mov_b32 s24, 0")
    nq = (MT + NT) // 4
    nqa = MT // 4
    SG = 28
    SL = SG + nq
    if tile_addr:
        for q in range(nq):
            tile_addr(a, q, SG + q)
    else:
        for q in range(nqa):
            a(f"s_add_u32 s60, s21, s20")
            a(f"s_add_u32 s60, s60, {4*q}")
            a(f"s_mul_i32 s60, s60, {a_stride}")
            a(f"s_add_u32 s{SG+q}, s60, {a_base}")
        for q in range(nq - nqa):
            bc, tc = bmap(q)
            a(f"s_add_u32 s60, s22, s20")
            a(f"s_add_u32 s60, s60, {tc}")
            a(f"s_mul_i32 s60, s60, {b_stride}")
            a(f"s_add_u32 s{SG+nqa+q}, s60, {bc}")
    for q in range(nq):
        a(f"s_add_u32 s60, s20, {4*q}")
        a(f"s_mul_i32 s{SL+q}, s60, {KG*1024}")
    if k0 is not None:
        for q in range(nq):
            a(f"s_add_u32 s{SG+q}, s{SG+q}, {k0}")
    STG = (MT + NT) * KG * 1024
    g.lds = NS * STG
    assert (NS - 2) * nq * KG <= 63 and g.lds <= 163840
    a(f"s_mul_i32 s60, s23, {MTw*KG*1024}")
    a("v_add_u32 v5, s60, v4")
    a(f"s_mul_i32 s60, s24, {NTw*KG*1024}")
    a(f"s_add_u32 s60, s60, {MT*KG*1024}")
    a("v_add_u32 v6, s60, v4")
    a("v_add_u32 v7, 0x10000, v5")
    a("v_add_u32 v8, 0x10000, v6")
    a("v_add_u32 v9, 0x20000, v5")
    a("v_add_u32 v10, 0x20000, v6")
    for i in range(0, MTw * NTw * 4, 2):
        a(f"v_mov_b64 v[{ACC+i}:{ACC+i+1}], 0")
    if lead_barrier:
        a("s_barrier")

    def issue(s_stage):
        for q in range(nq):
            a(f"s_add_u32 m0, {s_stage}, s{SL+q}")
            a("s_nop 0")
            sc = all_sc if all_sc is not None else (a_sc if q < nqa else "")
            for kg in range(KG):
                a(f"buffer_load_dwordx4 v4, s[8:11], s{SG+q} offen offset:{kg*1024}{sc} lds")
            a(f"s_add_u32 s{SG+q}, s{SG+q}, {KG*1024}")

    for st in range(min(NS - 1, NST)):
        issue(f"{st*STG}")

    def body(o):
        for st in range(NST):
            issued = min(NST, st + NS - 1)
            a(f"s_waitcnt vmcnt({(issued - st - 1)*nq*KG})")
            a("s_barrier")
            ro = (st % NS) * STG
            for kg in range(KG):
                FA = F0 + kg * PER * 4
                FB = FA + MTw * 4
                for mi in range(MTw):
                    off = ro + (mi * KG + kg) * 1024
                    a(f"ds_read_b128 v[{FA+4*mi}:{FA+4*mi+3}], v{5 if off < 65536 else (7 if off < 131072 else 9)} offset:{off % 65536}")
                for ni in range(NTw):
                    off = ro + (ni * KG + kg) * 1024
                    a(f"ds_read_b128 v[{FB+4*ni}:{FB+4*ni+3}], v{6 if off < 65536 else (8 if off < 131072 else 10)} offset:{off % 65536}")
            if st + NS - 1 < NST:
                issue(f"{((st + NS - 1) % NS)*STG}")
            for kg in range(KG):
                FA = F0 + kg * PER * 4
                FB = FA + MTw * 4
                a(f"s_waitcnt lgkmcnt({min(15, (KG-1-kg)*PER)})")
                for mi in range(MTw):
                    for ni in range(NTw):
                        c = g.acc(mi, ni)
                        fa, fb = vr(FA + 4 * mi, 4), vr(FB + 4 * ni, 4)
                        if o == 'nm':
                            a(f"v_mfma_f32_16x16x32_bf16 {vr(c,4)}, {fb}, {fa}, {vr(c,4)}")
                        else:
                            a(f"v_mfma_f32_16x16x32_bf16 {vr(c,4)}, {fa}, {fb}, {vr(c,4)}")
        a.nop(10)
        epilogue(a, g, o)

    fin = a.label(name + "_fin")
    if callable(orient):
        orient(a, body, fin)
    else:
        body(orient)
    a(f"{fin}:")
    return g


def gemm(a, name, nwg, MT, NT, KG, NST, a_base, a_stride, bmap, b_stride, tile_of_wg, orient, epilogue,
         pre=None):
    kernel_header(a, name)
    done = a.label(name + "_done")
    a(f"s_cmp_ge_u32 s2, {nwg}")
    a(f"s_cbranch_scc1 {done}")
    wave_id(a, 20, 1)
    lane_setup(a)
    load_srd(a, 8, "ws", None)
    tile_of_wg(a)
    if pre:
        pre(a)
    g = gemm_core(a, name, MT, NT, KG, NST, a_base, a_stride, bmap, b_stride, orient, epilogue)
    a(f"{done}:")
    a("s_endpgm")
    return name, g.vtop + 8, nwg, g.lds


def k_qkv(a, fused=False):
    def tile_of_wg(a):
        a("s_and_b32 s21, s2, 7")
        a("s_lshl_b32 s21, s21, 4")
        a("s_lshr_b32 s70, s2, 3")
        a("s_lshl_b32 s22, s70, 3")

    SC = " sc1" if fused else ""

    def orient(a, body, done):
        lv = a.label("qkv_v")
        a("s_cmp_ge_u32 s70, 64")
        a(f"s_cbranch_scc1 {lv}")
        body('nm')
        a(f"s_branch {done}")
        a(f"{lv}:")
        body('mn')

    def epi(a, g, o):
        T = g.vtop
        a("s_and_b32 s71, s70, 31")
        if o == 'nm':
            a("s_cmp_ge_u32 s70, 32")
            a(f"s_mov_b32 s72, {WS['QF']}")
            a(f"s_cselect_b32 s72, {WS['KF']}, s72")
        else:
            a(f"s_mov_b32 s72, {WS['VF']}")
        a("s_lshl_b32 s73, s23, 3")
        a("s_add_u32 s73, s73, s21")
        a("s_lshr_b32 s73, s73, 1")
        a("s_lshl_b32 s73, s73, 5")
        a("s_add_u32 s73, s73, s71")
        a("s_lshl_b32 s73, s73, 2")
        a("s_lshl_b32 s74, s24, 1")
        a("s_add_u32 s73, s73, s74")
        a("s_lshl_b32 s73, s73, 11")
        a("s_add_u32 s73, s73, s72")
        k = 0
        if o == 'nm':
            for mi in range(8):
                for p in range(2):
                    c0, c1 = g.acc(mi, 2 * p), g.acc(mi, 2 * p + 1)
                    t = T + 4 * (k % 2)
                    k += 1
                    a(f"v_cvt_pk_bf16_f32 v{t}, v{c0}, v{c0+1}")
                    a(f"v_cvt_pk_bf16_f32 v{t+1}, v{c0+2}, v{c0+3}")
                    a(f"v_cvt_pk_bf16_f32 v{t+2}, v{c1}, v{c1+1}")
                    a(f"v_cvt_pk_bf16_f32 v{t+3}, v{c1+2}, v{c1+3}")
                    off = (mi >> 1) * 32 * 4 * 2048 + p * 2048 + (mi & 1) * 1024
                    a(f"s_add_u32 s74, s73, {off}")
                    a(f"buffer_store_dwordx4 v[{t}:{t+3}], v4, s[8:11], s74 offen{SC}")
        else:
            for q in range(4):
                for ni in range(4):
                    c0, c1 = g.acc(2 * q, ni), g.acc(2 * q + 1, ni)
                    t = T + 4 * (k % 2)
                    k += 1
                    a(f"v_cvt_pk_bf16_f32 v{t}, v{c0}, v{c0+1}")
                    a(f"v_cvt_pk_bf16_f32 v{t+1}, v{c0+2}, v{c0+3}")
                    a(f"v_cvt_pk_bf16_f32 v{t+2}, v{c1}, v{c1+1}")
                    a(f"v_cvt_pk_bf16_f32 v{t+3}, v{c1+2}, v{c1+3}")
                    off = q * 32 * 4 * 2048 + (ni >> 1) * 2048 + (ni & 1) * 1024
                    a(f"s_add_u32 s74, s73, {off}")
                    a(f"buffer_store_dwordx4 v[{t}:{t+3}], v4, s[8:11], s74 offen{SC}")

    if fused:
        return gemm_core(a, "qkv", 16, 8, 1, 16, WS['XN'], 16384, lambda q: (WS['WQKV'], 4 * q), 16384,
                         orient, epi, lead_barrier=True, NS=6)
    return gemm(a, "qkv_kernel", 768, 16, 8, 1, 16, WS['XN'], 16384,
                lambda q: (WS['WQKV'], 4 * q), 16384, tile_of_wg, orient, epi)


def resid_epilogue(src_name, src_ws_off, dst_name, dst_ws_off, ssc="", dsc=""):
    def epi(a, g, o):
        T = g.vtop
        if src_name == 'ws':
            ssrd = 8
        else:
            load_srd(a, 12, src_name, None)
            ssrd = 12
        if dst_name == 'ws':
            dsrd = 8
        else:
            load_srd(a, 16, dst_name, None)
            dsrd = 16
        a("v_lshlrev_b32 v5, 10, v2")
        a("v_lshl_add_u32 v5, v3, 3, v5")
        a(f"s_mul_i32 s60, s23, {g.MTw}")
        a("s_add_u32 s60, s60, s21")
        a("s_lshl_b32 s60, s60, 14")
        a(f"s_mul_i32 s61, s24, {g.NTw}")
        a("s_add_u32 s61, s61, s22")
        a("s_lshl_b32 s61, s61, 5")
        a("s_add_u32 s60, s60, s61")
        for mi in range(g.MTw):
            for ni in range(g.NTw):
                c = g.acc(mi, ni)
                a(f"s_add_u32 s61, s60, {mi*16384 + ni*32 + src_ws_off}")
                a(f"buffer_load_dwordx2 v[{T}:{T+1}], v5, s[{ssrd}:{ssrd+3}], s61 offen{ssc}")
                a("s_waitcnt vmcnt(0)")
                a(f"v_lshlrev_b32 v{T+2}, 16, v{T}")
                a(f"v_and_b32 v{T+3}, 0xffff0000, v{T}")
                a(f"v_add_f32 v{c}, v{c}, v{T+2}")
                a(f"v_add_f32 v{c+1}, v{c+1}, v{T+3}")
                a(f"v_lshlrev_b32 v{T+2}, 16, v{T+1}")
                a(f"v_and_b32 v{T+3}, 0xffff0000, v{T+1}")
                a(f"v_add_f32 v{c+2}, v{c+2}, v{T+2}")
                a(f"v_add_f32 v{c+3}, v{c+3}, v{T+3}")
                a(f"v_cvt_pk_bf16_f32 v{c}, v{c}, v{c+1}")
                a(f"v_cvt_pk_bf16_f32 v{c+1}, v{c+2}, v{c+3}")
                a(f"s_add_u32 s61, s60, {mi*16384 + ni*32 + dst_ws_off}")
                a(f"buffer_store_dwordx2 v[{c}:{c+1}], v5, s[{dsrd}:{dsrd+3}], s61 offen{dsc}")
    return epi


def k_wo(a, fused=False):
    if fused:
        return gemm_core(a, "wo", 4, 4, 4, 32, WS['OF'], 128 * 1024, lambda q: (WS['WO'], 4 * q), 128 * 1024, 'nm',
                         resid_epilogue('x', 0, 'ws', WS['H'], "", " sc1"), a_sc=" sc1", lead_barrier=True, NS=5)

    def tile_of_wg(a):
        a("s_and_b32 s22, s2, 7")
        a("s_lshl_b32 s22, s22, 2")
        a("s_lshr_b32 s21, s2, 3")
        a("s_lshl_b32 s21, s21, 2")
    return gemm(a, "wo_kernel", 256, 4, 4, 4, 32, WS['OF'], 128 * 1024,
                lambda q: (WS['WO'], 4 * q), 128 * 1024, tile_of_wg, 'nm',
                resid_epilogue('x', 0, 'ws', WS['H']))


def k_down(a, fused=False):
    if fused:
        return gemm_core(a, "down", 4, 4, 4, 11, WS['ACT'], 44 * 1024, lambda q: (WS['WD'], 4 * q), 44 * 1024, 'nm',
                         resid_epilogue('ws', WS['H'], 'out', 0, " sc1", ""), a_sc=" sc1", lead_barrier=True, NS=5)

    def tile_of_wg(a):
        a("s_and_b32 s22, s2, 7")
        a("s_lshl_b32 s22, s22, 2")
        a("s_lshr_b32 s21, s2, 3")
        a("s_lshl_b32 s21, s21, 2")
    return gemm(a, "down_kernel", 256, 4, 4, 4, 11, WS['ACT'], 44 * 1024,
                lambda q: (WS['WD'], 4 * q), 44 * 1024, tile_of_wg, 'nm',
                resid_epilogue('ws', WS['H'], 'out', 0))


def k_ffn1(a, fused=False):
    SC = " sc1" if fused else ""
    def tile_of_wg(a):
        a("s_mul_i32 s21, s2, 5958")
        a("s_lshr_b32 s21, s21, 16")
        a("s_mul_i32 s60, s21, 11")
        a("s_sub_u32 s22, s2, s60")
        a("s_lshl_b32 s22, s22, 3")
        a("s_lshl_b32 s21, s21, 2")

    def bmap(q):
        return (WS['WU'] if (q & 1) else WS['WG'], (q >> 1) * 4)

    def epi(a, g, o):
        T = g.vtop
        C1 = 2.0 * (2.0 / 3.141592653589793) ** 0.5 * 1.4426950408889634
        a(f"s_mov_b32 s62, {f32(-C1)}")
        a(f"s_mov_b32 s63, {f32(-C1*0.044715)}")
        for mi in range(2):
            for ni in range(4):
                cg, cu = g.acc(mi, ni), g.acc(mi, ni + 4)
                for i in range(4):
                    x = cg + i
                    a(f"v_mul_f32 v{T}, v{x}, v{x}")
                    a(f"v_mov_b32 v{T+1}, s62")
                    a(f"v_fmac_f32 v{T+1}, s63, v{T}")
                    a(f"v_mul_f32 v{T+1}, v{T+1}, v{x}")
                    a(f"v_exp_f32 v{T+1}, v{T+1}")
                    a("s_nop 0")
                    a(f"v_add_f32 v{T+1}, 1.0, v{T+1}")
                    a(f"v_rcp_f32 v{T+1}, v{T+1}")
                    a("s_nop 0")
                    a(f"v_mul_f32 v{x}, v{x}, v{T+1}")
                    a(f"v_mul_f32 v{x}, v{x}, v{cu+i}")
        a("s_lshl_b32 s60, s23, 1")
        a("s_add_u32 s60, s60, s21")
        a(f"s_mul_i32 s60, s60, 44")
        a("s_lshl_b32 s61, s24, 2")
        a("s_add_u32 s61, s61, s22")
        a("s_lshr_b32 s61, s61, 1")
        a("s_add_u32 s60, s60, s61")
        a("s_lshl_b32 s60, s60, 10")
        a(f"s_add_u32 s60, s60, {WS['ACT']}")
        k = 0
        for mi in range(2):
            for p in range(2):
                c0, c1 = g.acc(mi, 2 * p), g.acc(mi, 2 * p + 1)
                t = T + 4 * (k % 2)
                k += 1
                a(f"v_cvt_pk_bf16_f32 v{t}, v{c0}, v{c0+1}")
                a(f"v_cvt_pk_bf16_f32 v{t+1}, v{c0+2}, v{c0+3}")
                a(f"v_cvt_pk_bf16_f32 v{t+2}, v{c1}, v{c1+1}")
                a(f"v_cvt_pk_bf16_f32 v{t+3}, v{c1+2}, v{c1+3}")
                a(f"s_add_u32 s61, s60, {mi*44*1024 + p*1024}")
                a(f"buffer_store_dwordx4 v[{t}:{t+3}], v4, s[8:11], s61 offen{SC}")

    if fused:
        return gemm_core(a, "ffn1", 4, 16, 2, 8, WS['HN'], 16384, bmap, 16384, 'nm', epi, a_sc=" sc1", lead_barrier=True, NS=4)
    return gemm(a, "ffn1_kernel", 352, 4, 16, 2, 8, WS['HN'], 16384, bmap, 16384, tile_of_wg, 'nm', epi)


def softmax_tiles(a, S, ntiles, tmp):
    m, t, c = tmp, tmp + 1, tmp + 2
    regs = [b + i for b in S for i in range(4)]
    a(f"v_max_f32 v{m}, v{regs[0]}, v{regs[1]}")
    i = 2
    while i < len(regs):
        a(f"v_max3_f32 v{m}, v{m}, v{regs[i]}, v{regs[i+1]}")
        i += 2
    xred_g(a, m, t, "v_max_f32")
    a(f"v_mul_f32 v{m}, {f32(-SCALE_LOG2E)}, v{m}")
    a(f"v_mov_b32 v{c}, {f32(SCALE_LOG2E)}")
    for r in regs:
        a(f"v_fma_f32 v{r}, v{r}, v{c}, v{m}")
    for r in regs:
        a(f"v_exp_f32 v{r}, v{r}")
    a("s_nop 0")
    a(f"v_add_f32 v{m}, v{regs[0]}, v{regs[1]}")
    for r in regs[2:]:
        a(f"v_add_f32 v{m}, v{m}, v{r}")
    xred_g(a, m, t, "v_add_f32")
    a(f"v_rcp_f32 v{m}, v{m}")
    a("s_nop 0")
    for r in regs:
        a(f"v_mul_f32 v{r}, v{r}, v{m}")


def k_attn(a):
    name = "attn_kernel"
    kernel_header(a, name)
    done = a.label("attn_done")
    a("s_cmp_ge_u32 s2, 512")
    a(f"s_cbranch_scc1 {done}")
    wave_id(a, 3, 1)
    a("s_lshl_b32 s4, s2, 2")
    a("s_add_u32 s3, s3, s4")
    lane_setup(a)
    load_srd(a, 8, "ws", None)
    attn_body(a)
    a(f"{done}:")
    a("s_endpgm")
    return name, 248, 512, 0


def attn_body(a, sc=""):
    Q, K, V, KM, VM = 16, 48, 80, 112, 128
    S = 144
    P = 168
    O = 180
    TMP = 244
    a("s_lshl_b32 s4, s3, 13")
    for nm, base in (("QF", Q), ("KF", K), ("VF", V)):
        a(f"s_add_u32 s5, s4, {WS[nm]}")
        for i in range(8):
            if i == 4:
                a("s_add_u32 s5, s5, 4096")
            a(f"buffer_load_dwordx4 v[{base+4*i}:{base+4*i+3}], v4, s[8:11], s5 offen offset:{(i%4)*1024}{sc}")
    a("s_lshl_b32 s4, s3, 12")
    a(f"s_add_u32 s5, s4, {WS['KMF']}")
    for i in range(4):
        a(f"buffer_load_dwordx4 v[{KM+4*i}:{KM+4*i+3}], v4, s[8:11], s5 offen offset:{i*1024}{sc}")
    a(f"s_add_u32 s5, s4, {WS['VMF']}")
    a("v_lshlrev_b32 v5, 3, v1")
    for i in range(8):
        a(f"buffer_load_dwordx2 v[{VM+2*i}:{VM+2*i+1}], v5, s[8:11], s5 offen offset:{i*512}{sc}")
    for i in range(24):
        a(f"v_mov_b32 v{S+i}, 0")
    a("s_waitcnt vmcnt(0)")
    for qt in range(2):
        for kt in range(3):
            if qt == 0 and kt == 2:
                continue
            s = S + (qt * 3 + kt) * 4
            for w in range(4):
                ka = KM + 4 * w if kt == 0 else K + (w * 2 + kt - 1) * 4
                qb = Q + (w * 2 + qt) * 4
                a(f"v_mfma_f32_16x16x32_bf16 {vr(s,4)}, {vr(ka,4)}, {vr(qb,4)}, {vr(s,4)}")
    a.nop(10)
    a("v_mov_b32 v6, 0xff800000")
    a("v_lshlrev_b32 v7, 2, v3")
    a("v_cmp_gt_u32 vcc, 2, v3")
    a("s_nop 1")
    for qt in range(2):
        for i in range(4):
            r = S + (qt * 3) * 4 + i
            a(f"v_cndmask_b32 v{r}, v6, v{r}, vcc")
    for i in range(4):
        a(f"v_add_u32 v8, {i}, v7")
        a("v_cmp_ge_u32 vcc, v2, v8")
        a("s_nop 1")
        r = S + (0 * 3 + 1) * 4 + i
        a(f"v_cndmask_b32 v{r}, v6, v{r}, vcc")
        r = S + (1 * 3 + 2) * 4 + i
        a(f"v_cndmask_b32 v{r}, v6, v{r}, vcc")
    softmax_tiles(a, [S, S + 4], 2, TMP)
    softmax_tiles(a, [S + 12, S + 16, S + 20], 3, TMP)
    for qt in range(2):
        s0, s1, s2 = S + qt * 12, S + qt * 12 + 4, S + qt * 12 + 8
        p = P + qt * 6
        a(f"v_cvt_pk_bf16_f32 v{p}, v{s1}, v{s1+1}")
        a(f"v_cvt_pk_bf16_f32 v{p+1}, v{s1+2}, v{s1+3}")
        if qt == 0:
            a(f"v_mov_b32 v{p+2}, 0")
            a(f"v_mov_b32 v{p+3}, 0")
        else:
            a(f"v_cvt_pk_bf16_f32 v{p+2}, v{s2}, v{s2+1}")
            a(f"v_cvt_pk_bf16_f32 v{p+3}, v{s2+2}, v{s2+3}")
        a(f"v_cvt_pk_bf16_f32 v{p+4}, v{s0}, v{s0+1}")
        a(f"v_cvt_pk_bf16_f32 v{p+5}, v{s0+2}, v{s0+3}")
    for i in range(64):
        a(f"v_mov_b32 v{O+i}, 0")
    a("s_nop 1")
    for qt in range(2):
        p = P + qt * 6
        for et in range(8):
            o = O + (qt * 8 + et) * 4
            a(f"v_mfma_f32_16x16x32_bf16 {vr(o,4)}, {vr(V+4*et,4)}, {vr(p,4)}, {vr(o,4)}")
    for qt in range(2):
        p = P + qt * 6
        for et in range(8):
            o = O + (qt * 8 + et) * 4
            a(f"v_mfma_f32_16x16x16_bf16 {vr(o,4)}, {vr(VM+2*et,2)}, {vr(p+4,2)}, {vr(o,4)}")
    a.nop(10)
    a("s_lshr_b32 s4, s3, 5")
    a("s_lshl_b32 s4, s4, 18")
    a("s_and_b32 s5, s3, 31")
    a("s_lshl_b32 s5, s5, 12")
    a("s_add_u32 s4, s4, s5")
    a(f"s_add_u32 s4, s4, {WS['OF']}")
    for qt in range(2):
        for w in range(4):
            o0, o1 = O + (qt * 8 + 2 * w) * 4, O + (qt * 8 + 2 * w + 1) * 4
            a(f"v_cvt_pk_bf16_f32 v{o0}, v{o0}, v{o0+1}")
            a(f"v_cvt_pk_bf16_f32 v{o0+1}, v{o0+2}, v{o0+3}")
            a(f"v_cvt_pk_bf16_f32 v{o0+2}, v{o1}, v{o1+1}")
            a(f"v_cvt_pk_bf16_f32 v{o0+3}, v{o1+2}, v{o1+3}")
            a(f"buffer_store_dwordx4 v[{o0}:{o0+3}], v4, s[8:11], s4 offen offset:{w*1024}{sc}")
        if qt == 0:
            a(f"s_add_u32 s4, s4, {128*1024}")


L_WO, L_MEMS, L_SX, L_OX = 32768, 0, 16384, 28672
SPIN_MAX = 1 << 22


def k_chain(a):
    name = "chain_kernel"
    kernel_header(a, name)
    done = a.label("chain_done")
    a("s_cmp_ge_u32 s2, 256")
    a(f"s_cbranch_scc1 {done}")
    if os.environ.get("CH_T"):
        a("s_memrealtime s[80:81]")
        a("s_memtime s[82:83]")
    wave_id(a, 20, 1)
    lane_setup(a)
    load_srd(a, 8, "ws", None)
    load_srd(a, 12, "dbg", None)
    load_srd(a, 16, "mem0", None)
    a("s_getreg_b32 s21, hwreg(HW_REG_XCC_ID)")
    a("s_and_b32 s21, s21, 15")
    lbar = a.label("role_bar")
    a("s_cmp_lg_u32 s20, 0")
    a(f"s_cbranch_scc1 {lbar}")
    a("v_mov_b32 v6, 1")
    a("v_mov_b32 v7, 0")
    a("v_mov_b32 v8, 4")
    a("s_mov_b64 s[22:23], exec")
    a("s_mov_b64 exec, 1")
    lnx, lgot, lA2 = a.label("notx0"), a.label("gotrole"), a.label("takeA")
    a("s_cmp_lg_u32 s21, 0")
    a(f"s_cbranch_scc1 {lnx}")
    a("buffer_atomic_add v6, v7, s[12:15], 0 offen sc0")
    a("s_waitcnt vmcnt(0)")
    a("v_readfirstlane_b32 s24, v6")
    a("s_cmp_lt_u32 s24, 32")
    a(f"s_cbranch_scc1 {lgot}")
    a("v_mov_b32 v6, 1")
    a("buffer_atomic_add v6, v8, s[12:15], 0 offen sc0")
    a("s_waitcnt vmcnt(0)")
    a("s_mov_b32 s24, -1")
    a(f"s_branch {lgot}")
    a(f"{lnx}:")
    a("buffer_atomic_add v6, v8, s[12:15], 0 offen sc0")
    a("s_waitcnt vmcnt(0)")
    a("v_readfirstlane_b32 s24, v6")
    a("s_cmp_ge_u32 s24, 224")
    a(f"s_cbranch_scc1 {lA2}")
    a("s_mov_b32 s24, -1")
    a(f"s_branch {lgot}")
    a(f"{lA2}:")
    a("v_mov_b32 v6, 1")
    a("buffer_atomic_add v6, v7, s[12:15], 0 offen sc0")
    a("s_waitcnt vmcnt(0)")
    a("v_readfirstlane_b32 s24, v6")
    a(f"{lgot}:")
    a("v_mov_b32 v6, s24")
    a(f"v_mov_b32 v7, {L_OX}")
    a("ds_write_b32 v7, v6")
    a("s_waitcnt lgkmcnt(0)")
    a("s_mov_b64 exec, s[22:23]")
    a(f"{lbar}:")
    a("s_barrier")
    a(f"v_mov_b32 v7, {L_OX}")
    a("ds_read_b32 v6, v7")
    a("s_waitcnt lgkmcnt(0)")
    a("v_readfirstlane_b32 s24, v6")
    a("s_cmp_ge_u32 s24, 32")
    a(f"s_cbranch_scc1 {done}")
    a("s_barrier")
    lsk = a.label("nopub")
    a("s_cmp_lg_u32 s20, 0")
    a(f"s_cbranch_scc1 {lsk}")
    a("s_cmp_eq_u32 s21, 0")
    a("s_cselect_b32 s25, 1, 2")
    a("v_mov_b32 v6, s25")
    a("s_lshl_b32 s25, s24, 2")
    a("s_add_u32 s25, s25, 64")
    a("v_mov_b32 v7, s25")
    a("s_mov_b64 s[22:23], exec")
    a("s_mov_b64 exec, 1")
    a("buffer_store_dword v6, v7, s[12:15], 0 offen sc1")
    a("s_mov_b64 exec, s[22:23]")
    a(f"{lsk}:")
    for mat in range(3):
        for t in range(2):
            a("s_lshl_b32 s25, s24, 3")
            a("s_lshl_b32 s26, s20, 1")
            a("s_add_u32 s25, s25, s26")
            a(f"s_add_u32 s25, s25, {mat*256+t}")
            a("s_lshl_b32 s25, s25, 14")
            a(f"s_add_u32 s25, s25, {WS['WQKV']}")
            for kb in range(16):
                idx = [256, 384, 128][mat] + (t * 16 + kb) * 4
                if kb % 4 == 0 and kb:
                    a("s_add_u32 s25, s25, 4096")
                a(f"buffer_load_dwordx4 {reg(idx,4)}, v4, s[8:11], s25 offen offset:{(kb%4)*1024}")
    for i in range(8):
        a("s_lshl_b32 s25, s20, 3")
        a(f"s_add_u32 s25, s25, {i}")
        a("s_lshl_b32 s26, s25, 12")
        a(f"s_add_u32 m0, s26, {L_WO}")
        a("s_lshl_b32 s25, s25, 7")
        a("s_lshl_b32 s26, s24, 2")
        a("s_add_u32 s25, s25, s26")
        a("s_lshl_b32 s25, s25, 10")
        a(f"s_add_u32 s25, s25, {WS['WO']}")
        for kb in range(4):
            a(f"buffer_load_dwordx4 v4, s[8:11], s25 offen offset:{kb*1024} lds")
    a("v_mov_b32 v8, 0\nv_mov_b32 v9, 0\nv_mov_b32 v10, 0\nv_mov_b32 v11, 0")
    a("v_lshlrev_b32 v6, 4, v0")
    for i in range(4):
        a(f"ds_write_b128 v6, v[8:11] offset:{L_MEMS + i*4096}")
    a("s_mov_b32 s27, 0")
    lp = a.label("modepoll")
    a("v_lshlrev_b32 v6, 2, v1")
    a("v_and_b32 v6, 127, v6")
    a(f"{lp}:")
    a("buffer_load_dword v7, v6, s[12:15], 0 offen offset:64 sc1")
    a("s_waitcnt vmcnt(0)")
    a("s_add_u32 s27, s27, 1")
    a(f"s_cmp_gt_u32 s27, {SPIN_MAX}")
    a(f"s_cbranch_scc1 {done}")
    a("v_cmp_eq_u32 vcc, 0, v7")
    a(f"s_cbranch_vccnz {lp}")
    a("v_cmp_eq_u32 vcc, 2, v7")
    a("s_cmp_lg_u64 vcc, 0")
    a("s_cselect_b32 s28, 1, 0")
    a("v_and_b32 v6, 31, v1")
    a("v_lshrrev_b32 v7, 1, v6")
    a("v_lshlrev_b32 v5, 10, v7")
    a("v_and_b32 v7, 1, v6")
    a("v_lshl_add_u32 v5, v7, 9, v5")
    a("v_lshrrev_b32 v7, 5, v1")
    a("s_lshl_b32 s25, s20, 1")
    a("v_add_u32 v7, s25, v7")
    a("v_lshl_add_u32 v5, v7, 4, v5")
    a(f"v_add_u32 v5, {L_MEMS}, v5")
    a("v_lshlrev_b32 v6, 5, v1")
    a("s_lshl_b32 s25, s20, 11")
    a("v_add_u32 v6, s25, v6")
    a("v_lshlrev_b32 v7, 5, v2")
    a("v_lshl_add_u32 v7, v3, 3, v7")
    a("s_lshl_b32 s25, s24, 8")
    a("v_add_u32 v7, s25, v7")
    RD, MO = 124, 125
    a(f"v_lshrrev_b32 v{RD}, 3, v1")
    a(f"v_lshlrev_b32 v{RD}, 10, v{RD}")
    a(f"v_and_b32 v{MO}, 7, v1")
    a(f"v_lshl_add_u32 v{RD}, v{MO}, 3, v{RD}")
    a("s_lshl_b32 s25, s24, 13")
    a("s_lshl_b32 s26, s20, 6")
    a("s_add_u32 s25, s25, s26")
    a(f"v_add_u32 v{RD}, s25, v{RD}")
    a(f"v_lshrrev_b32 v8, 2, v{MO}")
    a("s_lshl_b32 s25, s20, 1")
    a("v_add_u32 v8, s25, v8")
    a("v_lshlrev_b32 v8, 10, v8")
    a(f"v_and_b32 v{MO}, 3, v{MO}")
    a(f"v_lshl_add_u32 v{MO}, v{MO}, 3, v8")
    a("s_lshl_b32 s25, s24, 5")
    a(f"v_add_u32 v{MO}, s25, v{MO}")
    a("s_lshl_b32 s30, s24, 2")
    a("s_add_u32 s30, s30, s20")
    a("s_lshl_b32 s31, s30, 10")
    a("s_lshl_b32 s30, s30, 11")
    MEMF, QA, KA, VA = 8, 72, 80, 88
    KX, VX, S = 96, 104, 112
    WOA, TMP = 126, 127
    a("s_mov_b32 s29, 0")
    a("v_cmp_gt_u32 vcc, 8, v2")
    a("v_mov_b32 v8, 0x10000000")
    a("s_nop 1")
    a("v_cndmask_b32 v7, v8, v7, vcc")
    a("v_cmp_gt_u32 s[44:45], 2, v3")
    a("v_cmp_gt_u32 s[46:47], 8, v1")
    a("s_lshl_b32 s25, s20, 15")
    a(f"s_add_u32 s25, s25, {L_WO}")
    a(f"v_add_u32 v{WOA}, s25, v4")
    for k in range(3):
        a(f"s_add_u32 s25, s20, {k+1}")
        a("s_and_b32 s25, s25, 3")
        a(f"s_mul_i32 s{40+k}, s25, 3072")
    a("s_mul_i32 s43, s20, 3072")
    a("s_lshl_b32 s48, s20, 10")
    a("v_and_b32 v8, 7, v2")
    a("v_lshl_add_u32 v8, v3, 4, v8")
    a("v_lshlrev_b32 v8, 4, v8")
    a("v_lshrrev_b32 v9, 3, v2")
    a("v_lshl_add_u32 v3, v9, 3, v8")
    a("v_add_u32 v9, 1, v9")
    a("v_lshl_add_u32 v2, v9, 10, v8")

    def load_kv():
        a("s_lshl_b32 s25, s29, 18")
        a("s_add_u32 s25, s25, s30")
        a(f"s_add_u32 s26, s25, {WS['KF']}")
        a(f"buffer_load_dwordx4 v[{KX}:{KX+3}], v4, s[8:11], s26 offen")
        a(f"buffer_load_dwordx4 v[{KX+4}:{KX+7}], v4, s[8:11], s26 offen offset:1024")
        a(f"s_add_u32 s26, s25, {WS['VF']}")
        a(f"buffer_load_dwordx4 v[{VX}:{VX+3}], v4, s[8:11], s26 offen")
        a(f"buffer_load_dwordx4 v[{VX+4}:{VX+7}], v4, s[8:11], s26 offen offset:1024")
    load_kv()
    a("buffer_load_dwordx4 v[8:11], v6, s[16:19], 0 offen")
    a("buffer_load_dwordx4 v[12:15], v6, s[16:19], 0 offen offset:16")
    a("s_waitcnt vmcnt(0) lgkmcnt(0)")
    a("s_barrier")
    PROF = os.environ.get("CH_PROF")

    def stamp(i):
        if PROF:
            a("s_memtime s[50:51]")
            a("s_waitcnt lgkmcnt(0)")
            a(f"s_mov_b32 s{60+i}, s50")

    def mfma(d, x, y, c):
        a(f"v_mfma_f32_16x16x32_bf16 {d}, {x}, {y}, {c}")

    def step_loop(sc):
        lstage = a.label("stage")
        loop = a.label("step")
        a(f"s_branch {lstage}")
        a(f"{loop}:")
        stamp(0)
        lp = a.label("mempoll")
        a(f"{lp}:")
        a("buffer_load_dwordx4 v[8:11], v6, s[8:11], s32 offen sc1")
        a("buffer_load_dwordx4 v[12:15], v6, s[8:11], s32 offen offset:16 sc1")
        a("s_add_u32 s27, s27, 1")
        a(f"s_cmp_gt_u32 s27, {SPIN_MAX}")
        a(f"s_cbranch_scc1 {done}")
        a("s_waitcnt vmcnt(0)")
        a("v_max3_u32 v16, v8, v9, v10")
        a("v_max3_u32 v17, v11, v12, v13")
        a("v_max3_u32 v16, v16, v14, v15")
        a("v_max_u32 v16, v16, v17")
        a("v_cmp_eq_u32 vcc, -1, v16")
        a(f"s_cbranch_vccnz {lp}")
        a(f"{lstage}:")
        stamp(1)
        a("ds_write_b128 v5, v[8:11]")
        a("ds_write_b128 v5, v[12:15] offset:256")
        a("s_waitcnt lgkmcnt(0)")
        a("s_barrier")
        for kb in range(16):
            a(f"ds_read_b128 v[{MEMF+4*kb}:{MEMF+4*kb+3}], v4 offset:{L_MEMS+kb*1024}")
        stamp(2)
        for kb in range(16):
            a(f"s_waitcnt lgkmcnt({15-kb})")
            m = vr(MEMF + 4 * kb, 4)
            for t in range(2):
                mfma(vr(QA+4*t,4), reg(256+(t*16+kb)*4,4), m, vr(QA+4*t,4) if kb else "0")
                mfma(vr(KA+4*t,4), reg(384+(t*16+kb)*4,4), m, vr(KA+4*t,4) if kb else "0")
            if kb == 2:
                a("s_and_b32 s25, s29, 1")
                a("s_lshl_b32 s25, s25, 18")
                a(f"s_add_u32 s33, s25, {WS['PART']}")
                a("s_lshl_b32 s25, s20, 16")
                a("s_add_u32 s34, s33, s25")
                a("s_add_u32 s26, s29, 1")
                a("s_mul_i32 s25, s26, 21846")
                a("s_lshr_b32 s25, s25, 16")
                a("s_mul_i32 s25, s25, 3")
                a("s_sub_u32 s25, s26, s25")
                a("s_lshl_b32 s35, s25, 13")
                a(f"s_add_u32 s35, s35, {WS['MEMX']}")
                a("s_add_u32 s25, s25, 2")
                a("s_cmp_ge_u32 s25, 3")
                a("s_cselect_b32 s26, 3, 0")
                a("s_sub_u32 s25, s25, s26")
                a("s_lshl_b32 s36, s25, 13")
                a(f"s_add_u32 s36, s36, {WS['MEMX']}")
            if kb == 6:
                for i in range(8):
                    a(f"s_add_u32 s{52+i}, s34, {i*8192}")
            if kb == 4:
                a("s_lshl_b32 s25, s29, 17")
                a("s_add_u32 s25, s25, s31")
                a(f"s_add_u32 s37, s25, {WS['KMF']}")
                a(f"s_add_u32 s38, s25, {WS['VMF']}")
                a(f"v_add_u32 v{TMP}, s43, v4")

        def vm(kb):
            m = vr(MEMF + 4 * kb, 4)
            for t in range(2):
                mfma(vr(VA+4*t,4), m, reg(128+(t*16+kb)*4,4), vr(VA+4*t,4) if kb else "0")
        vm(0)
        vm(1)
        vm(2)
        a("s_nop 1")
        stamp(3)
        QB, KB = QA, KA
        for (d, s_) in ((QB, QA), (KB, KA)):
            for i in range(4):
                a(f"v_cvt_pk_bf16_f32 v{d+i}, v{s_+2*i}, v{s_+2*i+1}")
        a("s_nop 1")
        mfma(vr(S,4), vr(KB,4), vr(QB,4), "0")
        mfma(vr(S+4,4), vr(KX,4), vr(QB,4), "0")
        mfma(vr(S+8,4), vr(KX+4,4), vr(QB,4), "0")
        a(f"buffer_store_dwordx4 v[{KB}:{KB+3}], v4, s[8:11], s37 offen")
        vm(3)
        vm(4)
        vm(5)
        vm(6)
        for t in range(3):
            a(f"ds_write_b128 v{TMP}, v[{S+4*t}:{S+4*t+3}] offset:{L_SX+t*1024}")
        vm(7)
        a("s_waitcnt lgkmcnt(0)")
        a("s_barrier")
        stamp(4)
        X = 8
        for k in range(4):
            a(f"ds_read_b128 v[{X+6*k}:{X+6*k+3}], v2 offset:{L_SX+k*3072}")
            a(f"ds_read_b64 v[{X+6*k+4}:{X+6*k+5}], v3 offset:{L_SX+k*3072}")
        for kb in range(8, 16):
            vm(kb)
        lend = a.label("last")
        a("s_cmp_eq_u32 s29, 63")
        a(f"s_cbranch_scc1 {lend}")
        pend = []
        for (i, kbs) in ((3, range(4)), (2, range(4)), (1, (2, 3))):
            for kb in kbs:
                pend.append(f"ds_read_b128 v[{8+16*i+4*kb}:{11+16*i+4*kb}], v{WOA} offset:{i*4096+kb*1024}")
        pend2 = []
        for (i, kbs) in ((1, (0, 1)), (0, range(4))):
            for kb in kbs:
                pend2.append(f"ds_read_b128 v[{8+16*i+4*kb}:{11+16*i+4*kb}], v{WOA} offset:{i*4096+kb*1024}")
        cnt = [0]

        def v(sx):
            a(sx)
            cnt[0] += 1
            if cnt[0] % 3 == 0 and pend:
                a(pend.pop(0))
        T = S
        a("s_waitcnt lgkmcnt(0)")
        for i in range(0, 6, 2):
            a(f"v_pk_add_f32 v[{X+i}:{X+i+1}], v[{X+i}:{X+i+1}], v[{X+6+i}:{X+7+i}]")
            a(f"v_pk_add_f32 v[{X+12+i}:{X+13+i}], v[{X+12+i}:{X+13+i}], v[{X+18+i}:{X+19+i}]")
        for i in range(0, 6, 2):
            a(f"v_pk_add_f32 v[{T+i}:{T+i+1}], v[{X+i}:{X+i+1}], v[{X+12+i}:{X+13+i}]")
        pend += pend2
        v("v_mov_b32 v72, 0xff800000")
        v(f"v_cndmask_b32 v{T+4}, v72, v{T+4}, s[44:45]")
        v(f"v_cndmask_b32 v{T+5}, v72, v{T+5}, s[44:45]")
        v(f"v_max3_f32 v72, v{T}, v{T+1}, v{T+2}")
        v(f"v_max3_f32 v73, v{T+3}, v{T+4}, v{T+5}")
        v("v_max_f32 v72, v72, v73")
        v(f"v_mov_b32 v74, {f32(SCALE_LOG2E)}")
        v(f"v_mov_b32 v75, {f32(SCALE_LOG2E)}")
        v("v_max_f32_dpp v72, v72, v72 row_ror:8 row_mask:0xf bank_mask:0xf")
        for sw in ("v_permlane16_swap_b32", "v_permlane32_swap_b32"):
            v("v_mov_b32 v73, v72")
            v("v_cvt_pk_bf16_f32 v88, v88, v89" if sw.startswith("v_permlane16") else "v_cvt_pk_bf16_f32 v92, v92, v93")
            v("v_cvt_pk_bf16_f32 v89, v90, v91" if sw.startswith("v_permlane16") else "v_cvt_pk_bf16_f32 v93, v94, v95")
            v(f"{sw} v72, v73")
            v("v_max_f32 v72, v72, v73")
        v(f"v_mul_f32 v72, {f32(-SCALE_LOG2E)}, v72")
        v("v_mov_b32 v73, v72")
        for i in range(0, 6, 2):
            v(f"v_pk_fma_f32 v[{T+i}:{T+i+1}], v[{T+i}:{T+i+1}], v[74:75], v[72:73]")
        for i in range(6):
            v(f"v_exp_f32 v{T+i}, v{T+i}")
        v("v_mov_b32 v90, 0")
        v("v_mov_b32 v91, 0")
        v("v_mov_b32 v94, 0")
        v("v_mov_b32 v95, 0")
        PT, PM = 76, 80
        v(f"v_cvt_pk_bf16_f32 v{PT}, v{T}, v{T+1}")
        v(f"v_cvt_pk_bf16_f32 v{PT+1}, v{T+2}, v{T+3}")
        v(f"v_cvt_pk_bf16_f32 v{PM}, v{T+4}, v{T+5}")
        v(f"v_pk_add_f32 v[72:73], v[{T}:{T+1}], v[{T+2}:{T+3}]")
        v(f"v_mov_b32 v{PM+2}, 0")
        v(f"v_mov_b32_dpp v{PT+2}, v{PT} row_ror:8 row_mask:0xf bank_mask:0xf")
        v(f"v_mov_b32_dpp v{PT+3}, v{PT+1} row_ror:8 row_mask:0xf bank_mask:0xf")
        v(f"v_mov_b32_dpp v{PM+1}, v{PM} row_ror:8 row_mask:0xf bank_mask:0xf")
        v(f"v_mov_b32 v{PM+3}, 0")
        v(f"v_pk_add_f32 v[72:73], v[72:73], v[{T+4}:{T+5}]")
        O = 112
        while pend:
            a(pend.pop(0))
        a("v_add_f32 v72, v72, v73")
        mfma(vr(O,4), vr(VX,4), vr(PT,4), "0")
        mfma(vr(O+4,4), vr(VX+4,4), vr(PT,4), "0")
        mfma(vr(O,4), vr(88,4), vr(PM,4), vr(O,4))
        mfma(vr(O+4,4), vr(92,4), vr(PM,4), vr(O+4,4))
        a("v_add_f32_dpp v72, v72, v72 row_ror:8 row_mask:0xf bank_mask:0xf")
        xred_g(a, 72, 73, "v_add_f32")
        a("v_rcp_f32 v72, v72")
        a("v_lshlrev_b32 v84, 3, v1")
        a(f"buffer_store_dwordx2 v[88:89], v84, s[8:11], s38 offen")
        a(f"buffer_store_dwordx2 v[92:93], v84, s[8:11], s38 offen offset:512")
        a("v_mov_b32 v73, v72")
        a("s_add_u32 s29, s29, 1")
        load_kv()
        for i in range(0, 8, 2):
            a(f"v_pk_mul_f32 v[{O+i}:{O+i+1}], v[{O+i}:{O+i+1}], v[72:73]")
        for i in range(4):
            a(f"v_cvt_pk_bf16_f32 v{O+i}, v{O+2*i}, v{O+2*i+1}")
        a("v_add_u32 v74, s48, v4")
        a(f"ds_write_b128 v74, v[{O}:{O+3}] offset:{L_OX}")
        a("s_waitcnt lgkmcnt(0)")
        a("s_barrier")
        stamp(5)
        OFR = 72
        for kb in range(4):
            a(f"ds_read_b128 v[{OFR+4*kb}:{OFR+4*kb+3}], v4 offset:{L_OX+kb*1024}")
        DS = [88, 92, 112, 116]

        def pack_store(i):
            d = DS[i % 4]
            a(f"v_cvt_pk_bf16_f32 v{d}, v{d}, v{d+1}")
            a(f"v_cvt_pk_bf16_f32 v{d+1}, v{d+2}, v{d+3}")
            a(f"v_min_u32 v{d}, 0xfffffffe, v{d}")
            a(f"v_min_u32 v{d+1}, 0xfffffffe, v{d+1}")
            a(f"buffer_store_dwordx2 v[{d}:{d+1}], v7, s[8:11], s{52+i} offen{sc}")
        for i in range(8):
            fb = 8 + 16 * (i % 4)
            d = DS[i % 4]
            if i == 0:
                a("s_waitcnt lgkmcnt(0)")
            elif i >= 4:
                a(f"s_waitcnt lgkmcnt({4*(7-i)})")
            for kb in range(4):
                mfma(vr(d,4), vr(fb+4*kb,4), vr(OFR+4*kb,4), vr(d,4) if kb else "0")
            if i < 4:
                for kb in range(4):
                    a(f"ds_read_b128 v[{fb+4*kb}:{fb+4*kb+3}], v{WOA} offset:{(i+4)*4096+kb*1024}")
            if i >= 2:
                pack_store(i - 2)
        pack_store(6)
        a("s_nop 3")
        pack_store(7)
        stamp(6)
        stamp(7)
        R = 8
        lp = a.label("partpoll")
        a(f"{lp}:")
        for j in range(4):
            a(f"buffer_load_dwordx2 v[{R+2*j}:{R+2*j+1}], v{RD}, s[8:11], s33 offen offset:{j*256} sc1")
        a("s_add_u32 s27, s27, 1")
        a(f"s_cmp_gt_u32 s27, {SPIN_MAX}")
        a(f"s_cbranch_scc1 {done}")
        a("s_waitcnt vmcnt(0)")
        a(f"v_max3_u32 v16, v{R}, v{R+1}, v{R+2}")
        a(f"v_max3_u32 v17, v{R+3}, v{R+4}, v{R+5}")
        a(f"v_max3_u32 v16, v16, v{R+6}, v{R+7}")
        a(f"v_max_u32 v16, v16, v17")
        a("v_cmp_eq_u32 vcc, -1, v16")
        a(f"s_cbranch_vccnz {lp}")
        stamp(8)
        for j in range(4):
            for hlf in range(2):
                src = R + 2 * j + hlf
                a(f"v_lshlrev_b32 v{20+4*j+2*hlf}, 16, v{src}")
                a(f"v_and_b32 v{21+4*j+2*hlf}, 0xffff0000, v{src}")
        for hlf in range(2):
            a(f"v_pk_add_f32 v[{20+2*hlf}:{21+2*hlf}], v[{20+2*hlf}:{21+2*hlf}], v[{24+2*hlf}:{25+2*hlf}]")
            a(f"v_pk_add_f32 v[{28+2*hlf}:{29+2*hlf}], v[{28+2*hlf}:{29+2*hlf}], v[{32+2*hlf}:{33+2*hlf}]")
        for hlf in range(2):
            a(f"v_pk_add_f32 v[{20+2*hlf}:{21+2*hlf}], v[{20+2*hlf}:{21+2*hlf}], v[{28+2*hlf}:{29+2*hlf}]")
        a("v_mov_b32 v28, -1\nv_mov_b32 v29, -1")
        A0 = 20
        for i in range(4):
            a(f"v_add_f32_dpp v{A0+i}, v{A0+i}, v{A0+i} row_ror:8 row_mask:0xf bank_mask:0xf")
        for sw in ("v_permlane16_swap_b32", "v_permlane32_swap_b32"):
            for i in range(4):
                a(f"v_mov_b32 v{24+i}, v{A0+i}")
            a("s_nop 0")
            for i in range(4):
                a(f"{sw} v{A0+i}, v{24+i}")
            a(f"v_pk_add_f32 v[20:21], v[20:21], v[24:25]")
            a(f"v_pk_add_f32 v[22:23], v[22:23], v[26:27]")
        a(f"v_cvt_pk_bf16_f32 v26, v{A0}, v{A0+1}")
        a(f"v_cvt_pk_bf16_f32 v27, v{A0+2}, v{A0+3}")
        a("v_min_u32 v26, 0xfffffffe, v26")
        a("v_min_u32 v27, 0xfffffffe, v27")
        a("s_mov_b64 exec, s[46:47]")
        a(f"buffer_store_dwordx2 v[26:27], v{MO}, s[8:11], s35 offen{sc}")
        a(f"buffer_store_dwordx2 v[28:29], v{MO}, s[8:11], s36 offen{sc}")
        a("s_mov_b64 exec, -1")
        for j in range(4):
            a(f"buffer_store_dwordx2 v[28:29], v{RD}, s[8:11], s33 offen offset:{j*256}{sc}")
        stamp(9)
        if PROF:
            lsk = a.label("noprof")
            a("s_cmp_lg_u32 s29, 21")
            a(f"s_cbranch_scc1 {lsk}")
            for i in range(10):
                a(f"v_mov_b32 v30, s{60+i}")
                a("s_lshl_b32 s25, s24, 2")
                a("s_add_u32 s25, s25, s20")
                a("s_lshl_b32 s25, s25, 6")
                a(f"s_add_u32 s25, s25, {120*MB + 4*i}")
                a("v_mov_b32 v31, 0")
                a("buffer_store_dword v30, v31, s[8:11], s25 offen")
            a(f"{lsk}:")
        a("s_mov_b32 s32, s35")
        a(f"s_branch {loop}")
        a(f"{lend}:")
        a.nop(8)
        a("v_cvt_pk_bf16_f32 v88, v88, v89")
        a("v_cvt_pk_bf16_f32 v89, v90, v91")
        a("v_cvt_pk_bf16_f32 v92, v92, v93")
        a("v_cvt_pk_bf16_f32 v93, v94, v95")
        a("v_lshlrev_b32 v84, 3, v1")
        a(f"buffer_store_dwordx2 v[88:89], v84, s[8:11], s38 offen")
        a(f"buffer_store_dwordx2 v[92:93], v84, s[8:11], s38 offen offset:512")
        if os.environ.get("CH_T"):
            a("s_memrealtime s[88:89]")
            a("s_memtime s[90:91]")
            a("s_waitcnt lgkmcnt(0)")
            for i in range(6):
                a(f"v_mov_b32 v30, s{80+2*i}")
                a("s_lshl_b32 s25, s24, 2")
                a("s_add_u32 s25, s25, s20")
                a("s_lshl_b32 s25, s25, 6")
                a(f"s_add_u32 s25, s25, {121*MB + 4*i}")
                a("v_mov_b32 v31, 0")
                a("buffer_store_dword v30, v31, s[8:11], s25 offen")
        a(f"s_branch {done}")

    if os.environ.get("CH_T"):
        a("s_memrealtime s[84:85]")
        a("s_memtime s[86:87]")
    lslow = a.label("slowloop")
    a("s_cmp_lg_u32 s28, 0")
    a(f"s_cbranch_scc1 {lslow}")
    step_loop("")
    a(f"{lslow}:")
    step_loop(" sc1")
    a(f"{done}:")
    a("s_endpgm")
    return name, 512, 256, 163840


def k_fused(a):
    import chain3
    name = "fused_kernel"
    kernel_header(a, name)
    done = a.label("fused_done")
    a("s_cmp_ge_u32 s2, 256")
    a(f"s_cbranch_scc1 {done}")
    if os.environ.get("CH_T"):
        a("s_memrealtime s[80:81]")
    wave_id(a, 20, 1)
    load_srd(a, 8, "ws", None)
    load_srd(a, 12, "dbg", None)
    load_srd(a, 16, "mem0", None)
    chain3.role_assign(a, done, chain3.L_DUMMY)
    lw = a.label("worker")
    a("s_cmp_ge_u32 s24, 32")
    a(f"s_cbranch_scc1 {lw}")
    chain3.chain_body(a, done, fused=True)
    a(f"{lw}:")
    lane_setup(a)
    a("s_sub_u32 s90, s24, 32")
    tl = a.label("task")
    l2 = a.label("phase2")
    a(f"{tl}:")
    a("s_cmp_ge_u32 s90, 768")
    a(f"s_cbranch_scc1 {l2}")
    lq, lgo = a.label("isq"), a.label("go")
    a("s_cmp_ge_u32 s90, 512")
    a(f"s_cbranch_scc1 {lq}")
    a("s_lshr_b32 s91, s90, 6")
    a("s_and_b32 s70, s90, 63")
    a("s_add_u32 s70, s70, 32")
    a(f"s_branch {lgo}")
    a(f"{lq}:")
    a("s_sub_u32 s70, s90, 512")
    a("s_lshr_b32 s91, s70, 5")
    a("s_and_b32 s70, s70, 31")
    a(f"{lgo}:")
    a("s_lshl_b32 s21, s91, 4")
    a("s_lshl_b32 s22, s70, 3")
    g = k_qkv(a, fused=True)
    def signal(srd, s_off):
        lns = a.label("nosig")
        a("s_cmp_lg_u32 s20, 0")
        a(f"s_cbranch_scc1 {lns}")
        a(f"v_mov_b32 v7, {s_off}")
        a("v_mov_b32 v8, 1")
        a("s_mov_b64 exec, 1")
        a(f"buffer_atomic_add v8, v7, s[{srd}:{srd+3}], 0 offen")
        a("s_mov_b64 exec, -1")
        a(f"{lns}:")

    def wait_cnt(s_off, target):
        lp, lok = a.label("dep"), a.label("depok")
        a("s_cmp_lg_u32 s20, 0")
        a(f"s_cbranch_scc1 {lok}")
        a("v_mov_b32 v7, 0")
        a(f"{lp}:")
        a(f"buffer_load_dword v8, v7, s[8:11], {s_off} offen sc1")
        a("s_add_u32 s96, s96, 1")
        a(f"s_cmp_gt_u32 s96, {1<<22}")
        a(f"s_cbranch_scc1 {lok}")
        a("s_waitcnt vmcnt(0)")
        a("v_readfirstlane_b32 s60, v8")
        a(f"s_cmp_ge_u32 s60, {target}")
        a(f"s_cbranch_scc1 {lok}")
        a("s_sleep 6")
        a(f"s_branch {lp}")
        a(f"{lok}:")
        a("s_barrier")

    def wait_flags(s_off):
        lp, lok = a.label("dep"), a.label("depok")
        a("s_cmp_lg_u32 s20, 0")
        a(f"s_cbranch_scc1 {lok}")
        a("v_and_b32 v7, 15, v1")
        a("v_lshlrev_b32 v7, 2, v7")
        a(f"{lp}:")
        a(f"buffer_load_dword v8, v7, s[8:11], {s_off} offen sc1")
        a("s_add_u32 s96, s96, 1")
        a(f"s_cmp_gt_u32 s96, {1<<22}")
        a(f"s_cbranch_scc1 {lok}")
        a("s_waitcnt vmcnt(0)")
        a("v_cmp_eq_u32 vcc, 0, v8")
        a(f"s_cbranch_vccz {lok}")
        a("s_sleep 6")
        a(f"s_branch {lp}")
        a(f"{lok}:")
        a("s_barrier")
    CNT = WS['CNT']
    lns = a.label("nosigkv")
    a("s_waitcnt vmcnt(0)")
    a("s_barrier")
    a("s_lshl_b32 s60, s91, 7")
    a(f"s_add_u32 s60, s60, {CNT}")
    signal(8, "s60")
    a("s_cmp_ge_u32 s90, 512")
    a(f"s_cbranch_scc1 {lns}")
    a("s_lshl_b32 s60, s91, 2")
    a("s_add_u32 s60, s60, 192")
    signal(12, "s60")
    a(f"{lns}:")
    a("s_add_u32 s90, s90, 224")
    a(f"s_branch {tl}")
    NA, NB, NL, NC, ND = 16, 64, 16, 44, 32
    GRP = NA + NB + NL + NC + ND
    a(f"{l2}:")
    a("s_sub_u32 s90, s90, 768")
    a("s_mov_b32 s96, 0")
    t2 = a.label("task2")
    nxt = a.label("next2")
    lB, lL, lC, lD = a.label("stB"), a.label("stL"), a.label("stC"), a.label("stD")
    a(f"{t2}:")
    a(f"s_cmp_ge_u32 s90, {36*GRP}")
    a(f"s_cbranch_scc1 {done}")
    if os.environ.get("CH_T"):
        a("s_memrealtime s[84:85]")
        a("s_waitcnt lgkmcnt(0)")
    a(f"s_mul_hi_u32 s91, s90, {-(-(1<<32)//GRP)}")
    a(f"s_mul_i32 s60, s91, {GRP}")
    a("s_sub_u32 s92, s90, s60")

    def finish(cnt_base, s_idx):
        a("s_waitcnt vmcnt(0)")
        a("s_barrier")
        a(f"s_lshl_b32 s60, {s_idx}, 7")
        a(f"s_add_u32 s60, s60, {CNT+cnt_base*128}")
        signal(8, "s60")
        a(f"s_branch {nxt}")

    def stage_b(delta, lnext, lo, hi):
        if lnext:
            a(f"s_cmp_ge_u32 s92, {hi}")
            a(f"s_cbranch_scc1 {lnext}")
        a(f"s_sub_u32 s93, s91, {delta}")
        a("s_cmp_ge_u32 s93, 32")
        a(f"s_cbranch_scc1 {nxt}")
        if lo:
            a(f"s_sub_u32 s92, s92, {lo}")

    def dep(cnt_base, s_idx, target):
        a(f"s_lshl_b32 s94, {s_idx}, 7")
        a(f"s_add_u32 s94, s94, {CNT+cnt_base*128}")
        wait_cnt("s94", target)

    stage_b(0, lB, 0, NA)
    a("s_lshr_b32 s95, s92, 3")
    a("s_lshl_b32 s60, s93, 1")
    a("s_add_u32 s95, s95, s60")
    a("s_lshr_b32 s61, s95, 3")
    dep(0, "s61", 96)
    a("s_lshl_b32 s94, s95, 9")
    a("s_and_b32 s60, s92, 7")
    a("s_lshl_b32 s60, s60, 6")
    a("s_add_u32 s94, s94, s60")
    a(f"s_add_u32 s94, s94, {WS['FLG']}")
    wait_flags("s94")
    a("s_and_b32 s3, s92, 7")
    a("s_lshl_b32 s3, s3, 2")
    a("s_add_u32 s3, s3, s20")
    a("s_lshl_b32 s60, s95, 5")
    a("s_add_u32 s3, s3, s60")
    attn_body(a, " sc1")
    a("s_and_b32 s61, s92, 7")
    a("s_lshl_b32 s62, s93, 3")
    a("s_add_u32 s61, s61, s62")
    finish(32, "s61")
    a(f"{lB}:")
    stage_b(1, lL, NA, NA + NB)
    a("s_lshr_b32 s95, s92, 3")
    a("s_lshl_b32 s61, s93, 3")
    a("s_add_u32 s61, s61, s95")
    dep(32, "s61", 2)
    a("s_lshl_b32 s21, s93, 2")
    a("s_and_b32 s22, s92, 7")
    a("s_lshl_b32 s22, s22, 2")
    a("s_lshl_b32 s97, s95, 14")

    def epi_b(a, g, o):
        a("v_lshlrev_b32 v5, 11, v2")
        a("v_lshl_add_u32 v5, v3, 4, v5")
        a("s_lshl_b32 s60, s23, 1")
        a("s_add_u32 s60, s60, s21")
        a("s_lshl_b32 s60, s60, 15")
        a("s_lshl_b32 s61, s24, 1")
        a("s_add_u32 s61, s61, s22")
        a("s_lshl_b32 s61, s61, 6")
        a("s_add_u32 s60, s60, s61")
        a("s_lshl_b32 s61, s95, 22")
        a("s_add_u32 s60, s60, s61")
        a(f"s_add_u32 s60, s60, {WS['PB']}")
        for mi in range(2):
            for ni in range(2):
                c = g.acc(mi, ni)
                a(f"s_add_u32 s61, s60, {mi*32768}")
                a(f"buffer_store_dwordx4 v[{c}:{c+3}], v5, s[8:11], s61 offen offset:{ni*64} sc1")
    gemm_core(a, "wo", 4, 4, 4, 4, WS['OF'], 128 * 1024, lambda q: (WS['WO'], 4 * q), 128 * 1024, 'nm', epi_b,
              a_sc=" sc1", lead_barrier=True, NS=5, k0="s97")
    finish(320, "s93")
    a(f"{lL}:")
    stage_b(2, lC, NA + NB, NA + NB + NL)
    dep(320, "s93", NB)
    load_srd(a, 12, "x", None)
    a("s_lshl_b32 s4, s93, 6")
    a("s_lshl_b32 s60, s92, 2")
    a("s_add_u32 s4, s4, s60")
    a("s_add_u32 s4, s4, s20")
    a("v_lshlrev_b32 v5, 5, v1")
    a("s_lshl_b32 s5, s4, 11")
    a(f"s_add_u32 s5, s5, {WS['PB']}")
    for ks in range(8):
        a(f"buffer_load_dwordx4 v[{16+8*ks}:{19+8*ks}], v5, s[8:11], s5 offen sc1")
        a(f"buffer_load_dwordx4 v[{20+8*ks}:{23+8*ks}], v5, s[8:11], s5 offen offset:16 sc1")
        if ks < 7:
            a(f"s_add_u32 s5, s5, {4*MB}")
    a("s_lshl_b32 s5, s4, 10")
    a("buffer_load_dwordx4 v[80:83], v4, s[12:15], s5 offen")
    a("s_waitcnt vmcnt(0)")
    for ks in range(1, 8):
        for i in range(0, 8, 2):
            a(f"v_pk_add_f32 v[{16+i}:{17+i}], v[{16+i}:{17+i}], v[{16+8*ks+i}:{17+8*ks+i}]")
    for i in range(4):
        a(f"v_lshlrev_b32 v{24+2*i}, 16, v{80+i}")
        a(f"v_and_b32 v{25+2*i}, 0xffff0000, v{80+i}")
    for i in range(0, 8, 2):
        a(f"v_pk_add_f32 v[{16+i}:{17+i}], v[{16+i}:{17+i}], v[{24+i}:{25+i}]")
    for i in range(4):
        a(f"v_cvt_pk_bf16_f32 v{80+i}, v{16+2*i}, v{17+2*i}")
    a(f"s_add_u32 s5, s5, {WS['H']}")
    a("buffer_store_dwordx4 v[80:83], v4, s[8:11], s5 offen sc1")
    for i in range(4):
        a(f"v_lshlrev_b32 v{16+2*i}, 16, v{80+i}")
        a(f"v_and_b32 v{17+2*i}, 0xffff0000, v{80+i}")

    def wsum(x, t):
        a("s_nop 1")
        for ror in (1, 2, 4, 8):
            a(f"v_add_f32_dpp v{x}, v{x}, v{x} row_ror:{ror} row_mask:0xf bank_mask:0xf")
            a("s_nop 1")
        xred_g(a, x, t)
    a("v_pk_add_f32 v[24:25], v[16:17], v[18:19]")
    a("v_pk_add_f32 v[26:27], v[20:21], v[22:23]")
    a("v_pk_add_f32 v[24:25], v[24:25], v[26:27]")
    a("v_add_f32 v24, v24, v25")
    wsum(24, 25)
    a(f"v_mul_f32 v24, {f32(1.0/512)}, v24")
    a("v_mov_b32 v26, 0")
    for i in range(8):
        a(f"v_sub_f32 v{16+i}, v{16+i}, v24")
        a(f"v_fmac_f32 v26, v{16+i}, v{16+i}")
    wsum(26, 25)
    a(f"v_mov_b32 v27, {f32(1e-5)}")
    a(f"v_fmac_f32 v27, {f32(1.0/512)}, v26")
    a("v_rsq_f32 v27, v27")
    a("s_nop 0")
    for i in range(8):
        a(f"v_mul_f32 v{16+i}, v{16+i}, v27")
    for i in range(4):
        a(f"v_cvt_pk_bf16_f32 v{80+i}, v{16+2*i}, v{17+2*i}")
    a("v_lshrrev_b32 v5, 2, v1")
    a("v_lshlrev_b32 v5, 10, v5")
    a("v_and_b32 v6, 3, v1")
    a("v_lshl_add_u32 v5, v6, 8, v5")
    a("s_lshr_b32 s5, s4, 4")
    a("s_lshl_b32 s5, s5, 14")
    a("s_and_b32 s60, s4, 15")
    a("s_lshl_b32 s60, s60, 4")
    a("s_add_u32 s5, s5, s60")
    a(f"s_add_u32 s5, s5, {WS['HN']}")
    a("buffer_store_dwordx4 v[80:83], v5, s[8:11], s5 offen sc1")
    finish(352, "s93")
    a(f"{lC}:")
    stage_b(3, lD, NA + NB + NL, NA + NB + NL + NC)
    dep(352, "s93", NL)
    a("s_lshl_b32 s21, s93, 2")
    a("s_lshl_b32 s22, s92, 1")

    def ta_c(a, q, sd):
        if q == 0:
            a("s_add_u32 s60, s21, s20")
            a("s_lshl_b32 s60, s60, 14")
            a(f"s_add_u32 s{sd}, s60, {WS['HN']}")
        else:
            a("s_and_b32 s60, s20, 1")
            a("s_add_u32 s60, s60, s22")
            a("s_lshl_b32 s60, s60, 14")
            a("s_lshr_b32 s61, s20, 1")
            a(f"s_mul_i32 s61, s61, {WS['WU']-WS['WG']}")
            a("s_add_u32 s60, s60, s61")
            a(f"s_add_u32 s{sd}, s60, {WS['WG']}")

    def epi_c(a, g, o):
        T = g.vtop
        C1 = 2.0 * (2.0 / 3.141592653589793) ** 0.5 * 1.4426950408889634
        a(f"s_mov_b32 s62, {f32(-C1)}")
        a(f"s_mov_b32 s63, {f32(-C1*0.044715)}")
        for ni in range(2):
            cg, cu = g.acc(0, ni), g.acc(0, ni + 2)
            for i in range(4):
                x = cg + i
                a(f"v_mul_f32 v{T}, v{x}, v{x}")
                a(f"v_mov_b32 v{T+1}, s62")
                a(f"v_fmac_f32 v{T+1}, s63, v{T}")
                a(f"v_mul_f32 v{T+1}, v{T+1}, v{x}")
                a(f"v_exp_f32 v{T+1}, v{T+1}")
                a("s_nop 0")
                a(f"v_add_f32 v{T+1}, 1.0, v{T+1}")
                a(f"v_rcp_f32 v{T+1}, v{T+1}")
                a("s_nop 0")
                a(f"v_mul_f32 v{x}, v{x}, v{T+1}")
                a(f"v_mul_f32 v{x}, v{x}, v{cu+i}")
        c0, c1 = g.acc(0, 0), g.acc(0, 1)
        a(f"v_cvt_pk_bf16_f32 v{T}, v{c0}, v{c0+1}")
        a(f"v_cvt_pk_bf16_f32 v{T+1}, v{c0+2}, v{c0+3}")
        a(f"v_cvt_pk_bf16_f32 v{T+2}, v{c1}, v{c1+1}")
        a(f"v_cvt_pk_bf16_f32 v{T+3}, v{c1+2}, v{c1+3}")
        a("s_add_u32 s60, s21, s20")
        a("s_mul_i32 s60, s60, 44")
        a("s_add_u32 s60, s60, s92")
        a("s_lshl_b32 s60, s60, 10")
        a(f"s_add_u32 s60, s60, {WS['ACT']}")
        a(f"buffer_store_dwordx4 v[{T}:{T+3}], v4, s[8:11], s60 offen sc1")
    gemm_core(a, "ffn1", 4, 4, 4, 4, 0, 0, None, 0, 'nm', epi_c, a_sc=" sc1", lead_barrier=True, NS=5, WM=4, tile_addr=ta_c)
    finish(384, "s93")
    a(f"{lD}:")
    stage_b(4, None, NA + NB + NL + NC, GRP)
    dep(384, "s93", NC)
    a("s_lshl_b32 s21, s93, 2")
    a("s_lshr_b32 s60, s92, 4")
    a("s_lshl_b32 s60, s60, 1")
    a("s_add_u32 s21, s21, s60")
    a("s_and_b32 s22, s92, 15")
    a("s_lshl_b32 s22, s22, 1")

    def ta_d(a, q, sd):
        a("s_and_b32 s60, s20, 1")
        a("s_cmp_ge_u32 s20, 2")
        a("s_cselect_b32 s61, s22, s21")
        a("s_add_u32 s60, s60, s61")
        a(f"s_mul_i32 s60, s60, {44*1024}")
        a(f"s_mov_b32 s61, {WS['ACT']}")
        a("s_cmp_ge_u32 s20, 2")
        a(f"s_cselect_b32 s61, {WS['WD']}, s61")
        a(f"s_add_u32 s{sd}, s60, s61")
    gemm_core(a, "down", 2, 2, 4, 11, 0, 0, None, 0, 'nm', resid_epilogue('ws', WS['H'], 'out', 0, " sc1", ""),
              lead_barrier=True, NS=10, tile_addr=ta_d, all_sc=" sc1")
    a(f"{nxt}:")
    if os.environ.get("CH_T"):
        a("s_memrealtime s[88:89]")
        a("s_waitcnt lgkmcnt(0)")
        a("v_mov_b32 v30, s88")
        a("v_mov_b32 v31, s84")
        a("s_lshl_b32 s60, s90, 4")
        a(f"s_add_u32 s60, s60, {122*MB}")
        a("v_mov_b32 v32, 0")
        a("buffer_store_dwordx2 v[30:31], v32, s[8:11], s60 offen")
    a("s_add_u32 s90, s90, 224")
    a(f"s_branch {t2}")
    a(f"{done}:")
    a("s_endpgm")
    return name, 512, 256, 163840


def main():
    a = Asm()
    kernels = []
    body = Asm()
    from chain3 import k_chain3
    for fn in (k_prep, k_fused):
        kernels.append(fn(body))
    hdr = open(os.path.join(os.path.dirname(os.path.abspath(__file__)), "header.txt")).read()
    out = hdr
    for (n, vg, grid, lds) in kernels:
        out += f"; @launch kernel={n} grid=({grid},1,1) block=(256,1,1) lds={lds}\n"
    out += '.amdgcn_target "amdgcn-amd-amdhsa--gfx950"\n.text\n'
    out += body.text()
    out += '.section .rodata,"a"\n'
    for (n, vg, grid, lds) in kernels:
        out += ".p2align 6\n" + kernel_desc(n, vg)
    path = sys.argv[1] if len(sys.argv) > 1 else f"cdna_kernels/{NAME}.s"
    open(path, "w").write(out)
    print("wrote", path, len(out))


if __name__ == "__main__":
    main()
```
